```python
import torch

def _softmax(x, axis=-1):
    return torch.softmax(x, dim=axis)
def _gelu(x):
    return torch.nn.functional.gelu(x, approximate="tanh")
def _silu(x):
    return torch.nn.functional.silu(x)
def _sigmoid(x):
    return torch.sigmoid(x)
def _layernorm(x, axis=-1, eps=1e-5):
    m = x.mean(dim=axis, keepdim=True)
    v = x.var(dim=axis, keepdim=True, unbiased=False)
    return (x - m) / torch.sqrt(v + eps)
def _scatter_add(tgt, idx, src, axis=0):
    return tgt.clone().index_add_(axis, idx, src)
def _segment_sum(src, seg, n):
    out = torch.zeros((n,) + src.shape[1:], dtype=src.dtype)
    return out.index_add_(0, seg, src)
def _pad(x, pw):
    flat = tuple(v for pair in reversed(pw) for v in pair)
    return torch.nn.functional.pad(x, flat)

kernel_name = 'standalone__geglu_ffn__decode'

def setup_inputs():

    _w = (lambda a: (lambda t: t.to(torch.bfloat16) if t.is_floating_point() else t)(torch.as_tensor(a)))
    B, S, D, F = 1, 1, 1024, 3584
    return {
        "x": _w((lambda *s: torch.randn(*s, dtype=torch.bfloat16) * 0.05)(B, S, D)),
        "w_gate": _w((lambda *s: torch.randn(*s, dtype=torch.bfloat16) * 0.05)(D, F)),
        "w_up": _w((lambda *s: torch.randn(*s, dtype=torch.bfloat16) * 0.05)(D, F)),
        "w_down": _w((lambda *s: torch.randn(*s, dtype=torch.bfloat16) * 0.05)(F, D)),
    }

def reference(x, w_gate, w_up, w_down):
    return (_gelu(x @ w_gate) * (x @ w_up)) @ w_down
```

```python
HEADER = """; Kernarg layout for this problem (56 bytes, ptrs only, base s[0:1]):
"""

class Asm:
    def __init__(self):
        self.lines = []
    def __call__(self, s=""):
        for l in s.split("\n"):
            self.lines.append("    " + l.strip() if l.strip() and not l.strip().endswith(":") else l.strip())
    def label(self, name):
        self.lines.append(name + ":")
    def text(self):
        return "\n".join(self.lines) + "\n"

def kernel_begin(name):
    return f""".globl {name}
.p2align 8
.type {name},@function
{name}:
"""

def kd(name, vgpr, sgpr, extra=""):
    acc = (vgpr + 3) // 4 * 4
    return f""".p2align 6
.amdhsa_kernel {name}
  .amdhsa_next_free_vgpr {vgpr}
  .amdhsa_next_free_sgpr {sgpr}
  .amdhsa_accum_offset {acc}
  .amdhsa_group_segment_fixed_size 0
  .amdhsa_kernarg_size 56
  .amdhsa_user_sgpr_count 2
  .amdhsa_user_sgpr_kernarg_segment_ptr 1
  .amdhsa_system_sgpr_workgroup_id_x 1
{extra}.end_amdhsa_kernel
"""
```

```python
import sys
from gen_common import *

NT = sys.argv[2] if len(sys.argv) > 2 else ""
NWG = 224

def k1():
    a = Asm()
    a(f"""s_cmp_ge_u32 s2, {NWG}
    s_cbranch_scc1 L_k1_end
    s_load_dwordx2 s[4:5], s[0:1], 0
    s_load_dwordx2 s[8:9], s[0:1], 8
    s_load_dwordx2 s[12:13], s[0:1], 16
    s_load_dwordx2 s[16:17], s[0:1], 24
    s_load_dwordx2 s[20:21], s[0:1], 48
    s_mov_b32 s6, 2048
    s_mov_b32 s7, 0x20000
    s_mov_b32 s10, 7340032
    s_mov_b32 s11, 0x20000
    s_mov_b32 s14, 7340032
    s_mov_b32 s15, 0x20000
    s_mov_b32 s18, 7340032
    s_mov_b32 s19, 0x20000
    s_mov_b32 s22, {NWG*4096}
    s_mov_b32 s23, 0x20000
    s_and_b32 s24, s2, 7
    s_lshr_b32 s25, s2, 3
    s_mul_i32 s24, s24, 28
    s_add_u32 s24, s24, s25
    s_lshl_b32 s26, s24, 5
    s_lshl_b32 s27, s24, 15
    """)
    for i in range(8):
        a(f"s_add_u32 s{32+i}, s26, {i*7168}")
    for i in range(8):
        a(f"s_add_u32 s{40+i}, s27, {i*4096}")
    a("""s_mov_b32 s28, 0x05040100
    s_mov_b32 s29, 0x07060302
    v_lshrrev_b32 v1, 1, v0
    v_and_b32 v2, 1, v0
    v_mul_u32_u24 v3, 57344, v1
    v_lshl_add_u32 v3, v2, 4, v3
    v_lshlrev_b32 v4, 4, v1
    v_bfe_u32 v5, v0, 5, 1
    v_lshlrev_b32 v5, 11, v5
    v_lshrrev_b32 v6, 6, v0
    v_lshl_add_u32 v5, v6, 9, v5
    v_and_b32 v7, 31, v0
    v_lshl_add_u32 v5, v7, 4, v5
    s_waitcnt lgkmcnt(0)
    buffer_load_dwordx4 v[8:11], v4, s[4:7], 0 offen""")
    G = lambda i: 32 + 4*i
    U = lambda i: 64 + 4*i
    D = lambda i: 96 + 4*i
    for i in range(8):
        a(f"buffer_load_dwordx4 v[{G(i)}:{G(i)+3}], v3, s[8:11], s{32+i} offen {NT}")
        a(f"buffer_load_dwordx4 v[{U(i)}:{U(i)+3}], v3, s[12:15], s{32+i} offen {NT}")
    for i in range(8):
        a(f"buffer_load_dwordx4 v[{D(i)}:{D(i)+3}], v5, s[16:19], s{40+i} offen {NT}")
    for j in range(16):
        a(f"v_mov_b32 v{12+j}, 0")
    a("""v_and_b32 v28, 1, v0
    v_lshlrev_b32 v28, 7, v28
    v_bfe_u32 v29, v0, 2, 3
    v_lshl_add_u32 v28, v29, 4, v28
    v_bfe_u32 v29, v0, 5, 1
    v_lshl_add_u32 v28, v29, 8, v28
    v_lshl_add_u32 v1, v6, 2, v28
    v_and_b32 v28, 7, v0
    v_lshlrev_b32 v28, 5, v28
    v_lshl_add_u32 v2, v29, 4, v28""")
    total = 25
    for p in range(4):
        i = 2*p
        need = 1 + 2*(i+2)
        a(f"s_waitcnt vmcnt({total-need+1})")
        for c in range(4):
            a(f"v_perm_b32 v28, v{G(i+1)+c}, v{G(i)+c}, s28")
            a(f"v_perm_b32 v29, v{G(i+1)+c}, v{G(i)+c}, s29")
            a(f"v_dot2c_f32_bf16 v{12+2*c}, v28, v{8+p}")
            a(f"v_dot2c_f32_bf16 v{13+2*c}, v29, v{8+p}")
        a(f"s_waitcnt vmcnt({total-need})")
        for c in range(4):
            a(f"v_perm_b32 v28, v{U(i+1)+c}, v{U(i)+c}, s28")
            a(f"v_perm_b32 v29, v{U(i+1)+c}, v{U(i)+c}, s29")
            a(f"v_dot2c_f32_bf16 v{20+2*c}, v28, v{8+p}")
            a(f"v_dot2c_f32_bf16 v{21+2*c}, v29, v{8+p}")
    a("s_nop 3")
    for j in range(8):
        a(f"v_permlane32_swap_b32 v{12+j}, v{20+j}")
    a("s_nop 1")
    for j in range(8):
        a(f"v_add_f32 v{12+j}, v{12+j}, v{20+j}")
    a("s_nop 1")
    for j in range(4):
        a(f"v_permlane16_swap_b32 v{12+j}, v{16+j}")
    a("s_nop 1")
    for j in range(4):
        a(f"v_add_f32 v{12+j}, v{12+j}, v{16+j}")
    a("s_nop 1")
    a("""v_add_f32_dpp v12, v12, v12 row_ror:8 row_mask:0xf bank_mask:0x3
    v_add_f32_dpp v13, v13, v13 row_ror:8 row_mask:0xf bank_mask:0x3
    v_add_f32_dpp v12, v14, v14 row_ror:8 row_mask:0xf bank_mask:0xc
    v_add_f32_dpp v13, v15, v15 row_ror:8 row_mask:0xf bank_mask:0xc
    s_nop 1
    v_add_f32_dpp v12, v12, v12 row_shl:4 row_mask:0xf bank_mask:0x5
    v_add_f32_dpp v12, v13, v13 row_shr:4 row_mask:0xf bank_mask:0xa
    s_nop 1
    v_add_f32_dpp v12, v12, v12 quad_perm:[2,3,0,1] row_mask:0xf bank_mask:0xf
    ds_write_b32 v1, v12
    s_waitcnt lgkmcnt(0)
    s_barrier
    ds_read_b128 v[12:15], v2
    ds_read_b128 v[16:19], v2 offset:256
    s_waitcnt lgkmcnt(0)
    v_add_f32 v12, v12, v13
    v_add_f32 v14, v14, v15
    v_add_f32 v16, v16, v17
    v_add_f32 v18, v18, v19
    v_add_f32 v12, v12, v14
    v_add_f32 v16, v16, v18
    v_cvt_pk_bf16_f32 v12, v12, v16
    v_and_b32 v16, 0xffff0000, v12
    v_lshlrev_b32 v12, 16, v12
    v_mul_f32 v13, v12, v12
    v_mov_b32 v14, 0xc0135761
    v_fmac_f32 v14, 0xbdd2d3e8, v13
    v_mul_f32 v13, v12, v14
    v_exp_f32 v13, v13
    s_nop 0
    v_add_f32 v13, 1.0, v13
    v_rcp_f32 v13, v13
    s_nop 0
    v_mul_f32 v12, v12, v13
    v_cvt_pk_bf16_f32 v12, v12, v12
    v_lshlrev_b32 v12, 16, v12
    v_mul_f32 v12, v12, v16
    v_cvt_pk_bf16_f32 v12, v12, v12
    s_nop 1
    v_mov_b32_dpp v13, v12 quad_perm:[1,0,3,2] row_mask:0xf bank_mask:0xf
    v_perm_b32 v12, v13, v12, s28
    s_nop 1""")
    for p in range(4):
        a(f"v_mov_b32_dpp v{8+p}, v12 row_newbcast:{2*p} row_mask:0xf bank_mask:0xf")
    for j in range(8):
        a(f"v_mov_b32 v{12+j}, 0")
    a("""v_lshlrev_b32 v1, 10, v6
    v_lshl_add_u32 v1, v7, 5, v1
    v_bfe_u32 v2, v0, 5, 1
    v_lshl_add_u32 v1, v2, 4, v1
    s_lshl_b32 s30, s2, 12""")
    for p in range(4):
        i = 2*p
        a(f"s_waitcnt vmcnt({6-i})")
        for c in range(4):
            a(f"v_perm_b32 v28, v{D(i+1)+c}, v{D(i)+c}, s28")
            a(f"v_perm_b32 v29, v{D(i+1)+c}, v{D(i)+c}, s29")
            a(f"v_dot2c_f32_bf16 v{12+2*c}, v28, v{8+p}")
            a(f"v_dot2c_f32_bf16 v{13+2*c}, v29, v{8+p}")
    a("s_nop 3")
    for j in range(4):
        a(f"v_permlane32_swap_b32 v{12+j}, v{16+j}")
    a("s_nop 1")
    for j in range(4):
        a(f"v_add_f32 v{12+j}, v{12+j}, v{16+j}")
    a("buffer_store_dwordx4 v[12:15], v1, s[20:23], s30 offen")
    a.label("L_k1_end")
    a("s_endpgm")
    return a.text()

def k2():
    a = Asm()
    a(f"""s_cmp_ge_u32 s2, 256
    s_cbranch_scc1 L_k2_end
    s_load_dwordx2 s[4:5], s[0:1], 32
    s_load_dwordx2 s[20:21], s[0:1], 48
    s_mov_b32 s6, 2048
    s_mov_b32 s7, 0x20000
    s_mov_b32 s22, {NWG*4096}
    s_mov_b32 s23, 0x20000
    s_and_b32 s24, s2, 7
    s_lshr_b32 s25, s2, 3
    s_lshl_b32 s24, s24, 5
    s_add_u32 s24, s24, s25
    s_lshl_b32 s26, s24, 4
    s_add_u32 s27, s26, 262144
    s_add_u32 s28, s26, 524288
    s_add_u32 s29, s26, 786432
    v_lshlrev_b32 v1, 12, v0
    s_waitcnt lgkmcnt(0)
    buffer_load_dwordx4 v[4:7], v1, s[20:23], s26 offen
    buffer_load_dwordx4 v[8:11], v1, s[20:23], s27 offen
    buffer_load_dwordx4 v[12:15], v1, s[20:23], s28 offen
    buffer_load_dwordx4 v[16:19], v1, s[20:23], s29 offen
    v_lshrrev_b32 v2, 4, v0
    v_lshlrev_b32 v2, 1, v2
    s_lshl_b32 s30, s24, 3
    v_and_b32 v3, 15, v0
    v_cmp_eq_u32 vcc, 0, v3
    s_waitcnt vmcnt(2)
    v_add_f32 v4, v4, v8
    v_add_f32 v5, v5, v9
    v_add_f32 v6, v6, v10
    v_add_f32 v7, v7, v11
    s_waitcnt vmcnt(0)
    v_add_f32 v12, v12, v16
    v_add_f32 v13, v13, v17
    v_add_f32 v14, v14, v18
    v_add_f32 v15, v15, v19
    v_add_f32 v4, v4, v12
    v_add_f32 v5, v5, v13
    v_add_f32 v6, v6, v14
    v_add_f32 v7, v7, v15
    s_nop 1
    v_permlane32_swap_b32 v4, v6
    v_permlane32_swap_b32 v5, v7
    s_nop 1
    v_add_f32 v4, v4, v6
    v_add_f32 v5, v5, v7
    s_nop 1
    v_permlane16_swap_b32 v4, v5
    s_nop 1
    v_add_f32 v4, v4, v5
    s_nop 1
    v_add_f32_dpp v4, v4, v4 row_ror:8 row_mask:0xf bank_mask:0xf
    s_nop 1
    v_add_f32_dpp v4, v4, v4 row_ror:4 row_mask:0xf bank_mask:0xf
    s_nop 1
    v_add_f32_dpp v4, v4, v4 row_ror:2 row_mask:0xf bank_mask:0xf
    s_nop 1
    v_add_f32_dpp v4, v4, v4 row_ror:1 row_mask:0xf bank_mask:0xf
    v_cvt_pk_bf16_f32 v4, v4, v4
    s_and_saveexec_b64 s[32:33], vcc
    buffer_store_short v4, v2, s[4:7], s30 offen""")
    a.label("L_k2_end")
    a("s_endpgm")
    return a.text()

out = HEADER
out += f"; @launch kernel=geglu_k1_kernel grid=({NWG},1,1) block=(256,1,1) lds=512\n"
out += "; @launch kernel=geglu_k2_kernel grid=(256,1,1) block=(64,1,1) lds=0\n"
out += '.amdgcn_target "amdgcn-amd-amdhsa--gfx950"\n.text\n'
out += kernel_begin("geglu_k1_kernel") + k1()
out += kernel_begin("geglu_k2_kernel") + k2()
out += '.section .rodata,"a"\n'
out += kd("geglu_k1_kernel", 128, 48)
out += kd("geglu_k2_kernel", 20, 40)
open(sys.argv[1], "w").write(out)
```

```python
import sys
from gen_common import *
opts = dict(o.split("=") for o in sys.argv[2:])
NT = opts.get("nt", "nt").replace("none", "")
STAMP = int(opts.get("stamp", 0))
OUTPOL = opts.get("outpol", "").replace("_", " ")
X2MODE = opts.get("x2", "prod")
SLEEP = int(opts.get("sleep", 0))
NWG = 224
X1OFF = 0
EOFF = 0x3F008
X2OFF = 0x40000
SPIN = 200000

a = Asm()
def stamp(k):
    if STAMP: a(f"s_memrealtime s[{64+2*k}:{65+2*k}]")
def stamp_flush(ks):
    if not STAMP: return
    a("s_waitcnt vmcnt(0) lgkmcnt(0)")
    a(f"s_memrealtime s[{64+2*ks[-1]}:{65+2*ks[-1]}]")
    a(f"""s_mul_i32 s50, s2, 9
    s_add_u32 s50, s50, s3
    s_lshl_b32 s50, s50, 7
    s_add_u32 s50, s50, 0x8000000
    s_add_u32 s48, s20, s50
    s_addc_u32 s49, s21, 0
    s_mov_b64 exec, 1
    v_mov_b32 v1, 0
    s_waitcnt lgkmcnt(0)""")
    for k in ks:
        a(f"v_mov_b32 v2, s{64+2*k}\nv_mov_b32 v3, s{65+2*k}\nglobal_store_dwordx2 v1, v[2:3], s[48:49] offset:{k*8}\ns_nop 1")

stamp(0)
a(f"""s_cmp_ge_u32 s2, {NWG}
s_cbranch_scc1 L_end
s_load_dwordx8 s[8:15], s[0:1], 0
s_load_dwordx4 s[16:19], s[0:1], 32
s_load_dwordx2 s[20:21], s[0:1], 48
v_lshrrev_b32 v1, 6, v0
s_and_b32 s24, s2, 7
v_readfirstlane_b32 s3, v1
s_lshr_b32 s25, s2, 3
s_mul_i32 s24, s24, 7
s_lshr_b32 s26, s25, 2
s_add_u32 s24, s24, s26
s_and_b32 s25, s25, 3
s_mov_b32 s28, 0x05040100
s_mov_b32 s29, 0x07060302
v_and_b32 v2, 7, v0
v_and_b32 v7, 63, v0
s_cmp_eq_u32 s3, 4
s_cbranch_scc1 L_C
s_cmp_gt_u32 s3, 4
s_cbranch_scc1 L_B""")
a(f"""v_lshrrev_b32 v1, 3, v0
s_mul_i32 s26, s25, {256*7168}
s_lshl_b32 s27, s24, 7
s_add_u32 s26, s26, s27
v_mul_u32_u24 v3, 57344, v1
v_lshl_add_u32 v3, v2, 4, v3
v_add_u32 v16, s26, v3
s_lshl_b32 s27, s25, 9
v_lshlrev_b32 v4, 4, v1
v_add_u32 v4, s27, v4""")
for i in range(1, 8):
    a(f"v_add_u32 v{16+i}, {7168*i}, v16")
G = lambda i: 32 + 4*i
U = lambda i: 64 + 4*i
a("s_waitcnt lgkmcnt(0)")
stamp(1)
a("global_load_dwordx4 v[8:11], v4, s[8:9]")
for i in range(8):
    a(f"global_load_dwordx4 v[{G(i)}:{G(i)+3}], v{16+i}, s[10:11] {NT}")
    a(f"global_load_dwordx4 v[{U(i)}:{U(i)+3}], v{16+i}, s[12:13] {NT}")
stamp(2)
a("s_barrier")
for j in range(16):
    a(f"v_mov_b32 v{12+j}, 0")
a("""v_lshlrev_b32 v1, 6, v2
v_bfe_u32 v3, v0, 5, 1
v_lshl_add_u32 v1, v3, 5, v1
v_bfe_u32 v3, v0, 4, 1
v_lshl_add_u32 v1, v3, 4, v1
s_lshl_b32 s26, s3, 9
v_add_u32 v1, s26, v1""")
total = 17
for p in range(4):
    i = 2*p
    need = 1 + 2*(i+2)
    a(f"s_waitcnt vmcnt({total-need+1})")
    if p == 0: stamp(3)
    for c in range(4):
        a(f"v_perm_b32 v28, v{G(i+1)+c}, v{G(i)+c}, s28")
        a(f"v_perm_b32 v29, v{G(i+1)+c}, v{G(i)+c}, s29")
        a(f"v_dot2c_f32_bf16 v{12+2*c}, v28, v{8+p}")
        a(f"v_dot2c_f32_bf16 v{13+2*c}, v29, v{8+p}")
    a(f"s_waitcnt vmcnt({total-need})")
    if p == 3: stamp(4)
    for c in range(4):
        a(f"v_perm_b32 v28, v{U(i+1)+c}, v{U(i)+c}, s28")
        a(f"v_perm_b32 v29, v{U(i+1)+c}, v{U(i)+c}, s29")
        a(f"v_dot2c_f32_bf16 v{20+2*c}, v28, v{8+p}")
        a(f"v_dot2c_f32_bf16 v{21+2*c}, v29, v{8+p}")
for j in range(4):
    a(f"v_permlane32_swap_b32 v{12+j}, v{16+j}")
for j in range(4):
    a(f"v_permlane32_swap_b32 v{20+j}, v{24+j}")
for j in range(4):
    a(f"v_add_f32 v{12+j}, v{12+j}, v{16+j}")
for j in range(4):
    a(f"v_add_f32 v{20+j}, v{20+j}, v{24+j}")
a("""v_permlane16_swap_b32 v12, v14
v_permlane16_swap_b32 v13, v15
v_permlane16_swap_b32 v20, v22
v_permlane16_swap_b32 v21, v23
v_add_f32 v12, v12, v14
v_add_f32 v13, v13, v15
v_add_f32 v20, v20, v22
v_add_f32 v21, v21, v23
v_add_f32_dpp v28, v12, v12 row_ror:8 row_mask:0xf bank_mask:0xf
v_add_f32_dpp v30, v13, v13 row_ror:8 row_mask:0xf bank_mask:0xf
v_add_f32_dpp v29, v20, v20 row_ror:8 row_mask:0xf bank_mask:0xf
v_add_f32_dpp v31, v21, v21 row_ror:8 row_mask:0xf bank_mask:0xf
ds_write_b128 v1, v[28:31]
s_waitcnt lgkmcnt(0)""")
stamp(5)
a("s_barrier")
stamp_flush([0,1,2,3,4,5,6])
a("s_endpgm")

def tag_from_epoch():
    a("""s_add_u32 s40, s40, 0x7F4A7C15
    s_add_u32 s41, s41, 0x9E3779B9""")

a.label("L_B")
D = lambda i: 32 + 4*i
P = lambda p, c, h: 64 + 8*p + 2*c + h
a(f"""v_lshrrev_b32 v1, 3, v7
s_lshl_b32 s26, s24, 17
s_lshl_b32 s27, s25, 9
s_add_u32 s26, s26, s27
s_sub_u32 s30, s3, 5
s_lshl_b32 s27, s30, 7
s_add_u32 s26, s26, s27
s_add_u32 s26, s26, 4096
v_lshlrev_b32 v3, 14, v1
v_lshl_add_u32 v3, v2, 4, v3
v_add_u32 v3, s26, v3
v_add_u32 v4, 8192, v3
v_lshlrev_b32 v5, 4, v1
s_waitcnt lgkmcnt(0)
s_load_dwordx2 s[40:41], s[20:21], {EOFF}""")
stamp(1)
a("s_barrier")
stamp(2)
for i in range(8):
    a(f"global_load_dwordx4 v[{D(i)}:{D(i)+3}], v{3 + i//4}, s[14:15] offset:{(i%4)*2048-4096} {NT}")
stamp(3)
a("s_waitcnt lgkmcnt(0)")
a("s_barrier")
tag_from_epoch()
if X2MODE == "cons":
    a(f"""s_lshl_b32 s26, s25, 17
    s_lshl_b32 s27, s30, 15
    s_add_u32 s26, s26, s27
    s_lshl_b32 s27, s24, 4
    s_add_u32 s26, s26, s27
    s_add_u32 s26, s26, {X2OFF}
    v_lshlrev_b32 v6, 12, v2
    v_bfe_u32 v1, v0, 5, 1
    v_lshl_add_u32 v6, v1, 11, v6
    v_bfe_u32 v1, v0, 4, 1
    v_lshl_add_u32 v6, v1, 10, v6
    v_add_u32 v6, s26, v6""")
else:
    a(f"""s_lshl_b32 s26, s25, 11
    s_lshl_b32 s27, s30, 9
    s_add_u32 s26, s26, s27
    s_lshl_b32 s27, s24, 13
    s_add_u32 s26, s26, s27
    s_add_u32 s26, s26, {X2OFF}
    v_lshlrev_b32 v6, 6, v2
    v_bfe_u32 v1, v0, 5, 1
    v_lshl_add_u32 v6, v1, 5, v6
    v_bfe_u32 v1, v0, 4, 1
    v_lshl_add_u32 v6, v1, 4, v6
    v_add_u32 v6, s26, v6""")
a("""v_and_b32 v1, 8, v0
v_cmp_eq_u32 vcc, 0, v1
v_mov_b32 v21, s40
v_mov_b32 v23, s41""")
for j in range(8):
    a(f"v_mov_b32 v{12+j}, 0")
for p in range(4):
    a(f"s_waitcnt vmcnt({6-2*p})")
    for c in range(4):
        a(f"v_perm_b32 v{P(p,c,0)}, v{D(2*p+1)+c}, v{D(2*p)+c}, s28")
        a(f"v_perm_b32 v{P(p,c,1)}, v{D(2*p+1)+c}, v{D(2*p)+c}, s29")
stamp(4)
a("s_barrier")
stamp(5)
a("""ds_read_b128 v[8:11], v5 offset:2048
s_waitcnt lgkmcnt(0)""")
for p in range(4):
    for c in range(4):
        a(f"v_dot2c_f32_bf16 v{12+2*c}, v{P(p,c,0)}, v{8+p}")
        a(f"v_dot2c_f32_bf16 v{13+2*c}, v{P(p,c,1)}, v{8+p}")
a("s_nop 2")
for j in range(4):
    a(f"v_permlane32_swap_b32 v{12+j}, v{16+j}")
for j in range(4):
    a(f"v_add_f32 v{12+j}, v{12+j}, v{16+j}")
a("""s_nop 0
v_permlane16_swap_b32 v12, v14
v_permlane16_swap_b32 v13, v15
v_add_f32 v12, v12, v14
v_add_f32 v13, v13, v15
s_nop 0
v_add_f32_dpp v20, v12, v12 row_ror:8 row_mask:0xf bank_mask:0xf
v_add_f32_dpp v22, v13, v13 row_ror:8 row_mask:0xf bank_mask:0xf
s_and_b64 exec, exec, vcc
global_store_dwordx4 v6, v[20:23], s[20:21] sc1""")
stamp(6)
stamp_flush([0,1,2,3,4,5,6,7])
a("s_endpgm")

a.label("L_C")
a(f"""s_lshl_b32 s26, s24, 12
s_lshl_b32 s27, s25, 10
v_lshlrev_b32 v3, 3, v7
v_lshlrev_b32 v6, 4, v7
s_add_u32 s30, s26, s27
v_add_u32 v4, s30, v6
v_lshlrev_b32 v12, 2, v7
""")
for j in range(1, 4):
    a(f"""s_add_u32 s33, s25, {j}
    s_and_b32 s33, s33, 3
    s_lshl_b32 s33, s33, 10
    s_add_u32 s33, s33, s26
    v_add_u32 v{16+j}, s33, v6""")
a(f"""s_waitcnt lgkmcnt(0)
s_load_dwordx2 s[40:41], s[20:21], {EOFF}""")
stamp(1)
a(f"""global_load_dword v13, v12, s[16:17]
global_load_dword v14, v4, s[20:21] sc1
s_barrier
s_waitcnt lgkmcnt(0)""")
stamp(2)
tag_from_epoch()
a(f"""v_mov_b32 v33, s40
v_mov_b32 v35, s41
s_mov_b32 s35, {SPIN}
s_barrier""")
stamp(4)
a(f"""ds_read_b64 v[20:21], v3
ds_read_b64 v[22:23], v3 offset:512
ds_read_b64 v[24:25], v3 offset:1024
ds_read_b64 v[26:27], v3 offset:1536
s_waitcnt lgkmcnt(2)
v_add_f32 v20, v20, v22
v_add_f32 v21, v21, v23
s_waitcnt lgkmcnt(0)
v_add_f32 v24, v24, v26
v_add_f32 v25, v25, v27
v_add_f32 v32, v20, v24
v_add_f32 v34, v21, v25
global_store_dwordx4 v4, v[32:35], s[20:21] sc1""")
stamp(5)
a.label("L_C_x1")
a(f"""global_load_dwordx4 v[36:39], v17, s[20:21] sc1
global_load_dwordx4 v[40:43], v18, s[20:21] sc1
global_load_dwordx4 v[44:47], v19, s[20:21] sc1
s_sub_u32 s35, s35, 1
s_cbranch_scc1 L_end
s_waitcnt vmcnt(0)
v_xor_b32 v28, s40, v37
v_xor_b32 v29, s41, v39
v_xor_b32 v30, s40, v41
v_or3_b32 v28, v28, v29, v30
v_xor_b32 v29, s41, v43
v_xor_b32 v30, s40, v45
v_or3_b32 v28, v28, v29, v30
v_xor_b32 v29, s41, v47
v_or_b32 v28, v28, v29
v_cmp_ne_u32 vcc, 0, v28
s_cbranch_vccnz L_C_x1""")
stamp(6)
a("""v_add_f32 v20, v32, v36
v_add_f32 v21, v34, v38
v_add_f32 v24, v40, v44
v_add_f32 v25, v42, v46
v_add_f32 v12, v20, v24
v_add_f32 v16, v21, v25
v_cvt_pk_bf16_f32 v12, v12, v16
v_and_b32 v16, 0xffff0000, v12
v_lshlrev_b32 v12, 16, v12
v_mul_f32 v13, v12, v12
v_mov_b32 v14, 0xc0135761
v_fmac_f32 v14, 0xbdd2d3e8, v13
v_mul_f32 v13, v12, v14
v_exp_f32 v13, v13
v_lshlrev_b32 v15, 1, v7
v_add_f32 v13, 1.0, v13
v_rcp_f32 v13, v13
s_nop 0
v_mul_f32 v12, v12, v13
v_cvt_pk_bf16_f32 v12, v12, v12
v_lshlrev_b32 v12, 16, v12
v_mul_f32 v12, v12, v16
v_cvt_pk_bf16_f32 v12, v12, v12
ds_write_b16 v15, v12 offset:2048
s_waitcnt lgkmcnt(0)""")
stamp(7)
a(f"""s_barrier
s_cmp_ge_u32 s2, 128
s_cbranch_scc1 L_C_done
s_mov_b32 s35, {SPIN}""")
R = lambda k: 36 + 4*k
for k in range(4):
    a(f"v_mov_b32 v{R(k)}, 0\nv_mov_b32 v{R(k)+1}, s40\nv_mov_b32 v{R(k)+2}, 0\nv_mov_b32 v{R(k)+3}, s41")
if X2MODE == "cons":
    a(f"""s_lshl_b32 s26, s2, 12
    s_add_u32 s26, s26, {X2OFF}
    v_add_u32 v4, s26, v6
    s_mov_b32 s36, -1
    s_mov_b32 s37, 0x00ffffff""")
    loads = [f"global_load_dwordx4 v[{R(k)}:{R(k)+3}], v4, s[20:21] offset:{k*1024} sc1" for k in range(4)]
    pre = "s_mov_b64 exec, s[36:37]"
    mid = ""
else:
    a(f"""s_lshl_b32 s26, s2, 6
    s_add_u32 s26, s26, {X2OFF}
    v_lshrrev_b32 v1, 2, v7
    v_lshlrev_b32 v4, 13, v1
    v_and_b32 v1, 3, v7
    v_lshl_add_u32 v4, v1, 4, v4
    v_add_u32 v4, s26, v4
    v_add_u32 v8, 0x20000, v4
    v_add_u32 v9, 0x40000, v4
    v_add_u32 v10, 0x60000, v4
    s_mov_b32 s36, -1
    s_mov_b32 s37, 0""")
    regs = [4, 8, 9, 10]
    loads = [f"global_load_dwordx4 v[{R(k)}:{R(k)+3}], v{regs[k]}, s[20:21] sc1" for k in range(4)]
    loads = loads[:3] + ["s_mov_b64 exec, s[36:37]", loads[3], "s_mov_b64 exec, -1"]
    pre = ""
if X2MODE == "cons":
    a("""v_bfe_u32 v1, v7, 5, 1
    v_lshlrev_b32 v5, 3, v1
    v_bfe_u32 v1, v7, 4, 1
    v_lshl_add_u32 v5, v1, 2, v5
    v_bfe_u32 v1, v7, 3, 1
    v_lshl_add_u32 v5, v1, 1, v5""")
else:
    a("""v_and_b32 v1, 3, v7
    v_lshlrev_b32 v5, 2, v1
    v_bfe_u32 v1, v7, 5, 1
    v_lshl_add_u32 v5, v1, 1, v5""")
a("""s_lshl_b32 s27, s2, 4
v_add_u32 v5, s27, v5""")
if pre: a(pre)
a.label("L_C_x2")
if SLEEP: a(f"s_sleep {SLEEP}")
a("\n".join(loads))
a(f"""s_sub_u32 s35, s35, 1
s_cbranch_scc1 L_end
s_waitcnt vmcnt(0)
v_xor_b32 v28, s40, v37
v_xor_b32 v29, s41, v39
v_xor_b32 v30, s40, v41
v_or3_b32 v28, v28, v29, v30
v_xor_b32 v29, s41, v43
v_xor_b32 v30, s40, v45
v_or3_b32 v28, v28, v29, v30
v_xor_b32 v29, s41, v47
v_xor_b32 v30, s40, v49
v_or3_b32 v28, v28, v29, v30
v_xor_b32 v29, s41, v51
v_or_b32 v28, v28, v29
v_cmp_ne_u32 vcc, 0, v28
s_cbranch_vccnz L_C_x2
s_mov_b64 exec, -1""")
stamp(8)
if X2MODE == "cons":
    a(f"""v_cmp_eq_u32 vcc, 0, v2
    v_permlane32_swap_b32 v36, v44
    v_permlane32_swap_b32 v38, v46
    v_permlane32_swap_b32 v40, v48
    v_permlane32_swap_b32 v42, v50
    v_add_f32 v36, v36, v44
    v_add_f32 v40, v40, v48
    v_add_f32 v38, v38, v46
    v_add_f32 v42, v42, v50
    s_nop 0
    v_permlane16_swap_b32 v36, v40
    v_permlane16_swap_b32 v38, v42
    v_add_f32 v20, v36, v40
    v_add_f32 v21, v38, v42
    s_nop 0
    v_add_f32_dpp v20, v20, v20 row_ror:8 row_mask:0xf bank_mask:0x3
    v_add_f32_dpp v20, v21, v21 row_ror:8 row_mask:0xf bank_mask:0xc
    s_nop 1
    v_add_f32_dpp v20, v20, v20 row_half_mirror row_mask:0xf bank_mask:0xf
    s_nop 1
    v_add_f32_dpp v20, v20, v20 quad_perm:[1,0,3,2] row_mask:0xf bank_mask:0xf
    s_nop 1
    v_add_f32_dpp v20, v20, v20 quad_perm:[2,3,0,1] row_mask:0xf bank_mask:0xf""")
else:
    a(f"""v_and_b32 v1, 28, v7
    v_add_f32 v36, v36, v40
    v_add_f32 v38, v38, v42
    v_add_f32 v44, v44, v48
    v_add_f32 v46, v46, v50
    v_add_f32 v36, v36, v44
    v_add_f32 v38, v38, v46
    v_cmp_eq_u32 vcc, 0, v1
    s_nop 0
    v_permlane32_swap_b32 v36, v38
    v_add_f32 v20, v36, v38
    v_add_f32 v21, v36, v38
    s_nop 1
    v_permlane16_swap_b32 v20, v21
    v_add_f32 v20, v20, v21
    s_nop 1
    v_add_f32_dpp v20, v20, v20 row_ror:8 row_mask:0xf bank_mask:0xf
    s_nop 1
    v_add_f32_dpp v20, v20, v20 row_ror:4 row_mask:0xf bank_mask:0xf""")
a(f"""v_cvt_pk_bf16_f32 v20, v20, v20
s_and_b64 exec, exec, vcc
global_store_short v5, v20, s[16:17] {OUTPOL}
s_cmp_lg_u32 s2, 0
s_cbranch_scc1 L_C_done
s_mov_b64 exec, 1
v_mov_b32 v22, s40
v_mov_b32 v23, s41
v_mov_b32 v24, {EOFF}
global_store_dwordx2 v24, v[22:23], s[20:21]""")
stamp(9)
a.label("L_C_done")
stamp_flush([0,1,2,4,5,6,7,8,9,10])
a.label("L_end")
a("s_endpgm")

out = HEADER + f"; @launch grid=({NWG},1,1) block=(576,1,1) lds=2304\n"
out += '.amdgcn_target "amdgcn-amd-amdhsa--gfx950"\n.text\n'
out += kernel_begin("standalone__geglu_ffn__decode_kernel") + a.text()
out += '.section .rodata,"a"\n' + kd("standalone__geglu_ffn__decode_kernel", 96, 96 if STAMP else 48)
open(sys.argv[1], "w").write(out)
```

```python
import sys, re
from gen_common import *
src, out, NW, wlo, whi, K, nwg = sys.argv[1], sys.argv[2], *map(int, sys.argv[3:8])
mode = sys.argv[8] if len(sys.argv) > 8 else "max"
MULT = 10
s = open(src).read()
m = re.search(r"; @launch grid=(\S+) block=(\S+) lds=(\d+)\n", s)
s = s.replace(m.group(0), f"; @launch kernel=standalone__geglu_ffn__decode_kernel grid={m.group(1)} block={m.group(2)} lds={m.group(3)}\n; @launch kernel=readout_kernel grid=(1,1,1) block=(256,1,1) lds=64\n")
a = Asm()
a(f"""s_cmp_ge_u32 s2, 1
s_cbranch_scc1 L_ro_end
s_load_dwordx2 s[20:21], s[0:1], 48
v_mov_b32 v10, 0
v_mov_b32 v11, 0x7fffffff
v_mov_b32 v12, {'0x80000000' if mode=='max' else '0x7fffffff'}
ds_write_b32 v10, v11
ds_write_b32 v10, v12 offset:4
s_waitcnt lgkmcnt(0)
s_add_u32 s20, s20, 0x8000000
s_addc_u32 s21, s21, 0
s_barrier
global_load_dword v9, v10, s[20:21]
v_mul_u32_u24 v1, {NW*128}, v0
v_cmp_gt_u32 vcc, 224, v0
s_and_saveexec_b64 s[4:5], vcc
s_cbranch_execz L_ro_skip""")
for w in range(NW):
    a(f"global_load_dword v2, v1, s[20:21] offset:{w*128}\ns_waitcnt vmcnt(0)\nv_sub_u32 v2, v2, v9\nv_min_i32 v11, v11, v2")
a(f"""ds_min_i32 v10, v11
v_cmp_gt_u32 vcc, {nwg}, v0
s_and_b64 exec, exec, vcc
s_cbranch_execz L_ro_skip""")
for w in range(wlo, whi+1):
    a(f"global_load_dword v2, v1, s[20:21] offset:{w*128+K*8}\ns_waitcnt vmcnt(0)\nv_sub_u32 v2, v2, v9\nv_{mode}_i32 v12, v12, v2")
a(f"ds_{mode}_i32 v10, v12 offset:4")
a.label("L_ro_skip")
a(f"""s_mov_b64 exec, s[4:5]
s_waitcnt lgkmcnt(0)
s_barrier
ds_read_b64 v[2:3], v10
s_waitcnt lgkmcnt(0)
v_sub_u32 v2, v3, v2
v_min_u32 v2, 5000, v2
s_nop 1
v_readfirstlane_b32 s6, v2
s_nop 3
s_mul_i32 s6, s6, {MULT}
s_memrealtime s[8:9]
s_waitcnt lgkmcnt(0)""")
a.label("L_ro_spin")
a("""s_memrealtime s[10:11]
s_waitcnt lgkmcnt(0)
s_sub_u32 s12, s10, s8
s_cmp_lt_u32 s12, s6
s_cbranch_scc1 L_ro_spin""")
a.label("L_ro_end")
a("s_endpgm")
s = s.replace('.section .rodata,"a"\n', kernel_begin("readout_kernel") + a.text() + '.section .rodata,"a"\n' + kd("readout_kernel", 16, 32))
open(out, "w").write(s)
```

```python
import sys
from gen_common import *
opts = dict(o.split("=") for o in sys.argv[2:])
NT = opts.get("nt", "nt").replace("none", "")
STAMP = int(opts.get("stamp", 0))
OUTPOL = opts.get("outpol", "").replace("_", " ")
SPIN = int(opts.get("spin", 200000))
WROT = int(opts.get("wrot", 3))
BAR1 = int(opts.get("bar1", 0))
LFALL = int(opts.get("lfall", 64))
WARM2 = int(opts.get("warm2", 1))
WARM1 = int(opts.get("warm1", 0))
LLD = opts.get("lld", "sc1").replace("_", " ")
X2FIRST = int(opts.get("x2first", 0))
BWIN = int(opts.get("bwin", 8))
AWIN = int(opts.get("awin", 16))
X2P = int(opts.get("x2p", 0))
PADS = int(opts.get("pads", 1))
X1G = 0
EOFF = 0x7F008
X1L = 0x80000
X2OFF = 0x100000
NWV = 8
LDS_H = 2048
LDS_FLAG = 2048 + 128

a = Asm()
def stamp(k):
    if STAMP: a(f"s_memrealtime s[{64+2*k}:{65+2*k}]")
def stamp_flush(last):
    if not STAMP: return
    a("s_waitcnt vmcnt(0) lgkmcnt(0)")
    a(f"s_memrealtime s[{64+2*last}:{65+2*last}]")
    a("s_branch L_flush")
def emit_flush():
    if not STAMP: return
    a.label("L_flush")
    a(f"""s_sleep 127
    s_sleep 127
    s_mul_i32 s50, s2, {NWV}
    s_add_u32 s50, s50, s3
    s_lshl_b32 s50, s50, 7
    s_add_u32 s50, s50, 0x8000000
    s_add_u32 s48, s20, s50
    s_addc_u32 s49, s21, 0
    s_mov_b64 exec, -1
    v_lshlrev_b32 v1, 2, v7
    s_waitcnt lgkmcnt(0)
    s_getreg_b32 s94, hwreg(HW_REG_HW_ID)
    s_getreg_b32 s95, hwreg(HW_REG_XCC_ID)""")
    for k in range(32):
        a(f"v_writelane_b32 v2, s{64+k}, {k}")
    a("""s_mov_b64 exec, 0xffffffff
    global_store_dword v1, v2, s[48:49]
    s_endpgm""")
def tag_from_epoch():
    a("""s_add_u32 s40, s40, 0x7F4A7C15
    s_add_u32 s41, s41, 0x9E3779B9""")
def tagcheck(quads, acc0, acc1):
    first = True
    for q in quads:
        if first:
            a(f"v_xor_b32 v{acc0}, s40, v{q+1}\nv_xor_b32 v{acc1}, s41, v{q+3}")
            first = False
        else:
            a(f"v_bitop3_b32 v{acc0}, v{acc0}, v{q+1}, s40 bitop3:0xf6\nv_bitop3_b32 v{acc1}, v{acc1}, v{q+3}, s41 bitop3:0xf6")
    a(f"v_or_b32 v{acc0}, v{acc0}, v{acc1}\nv_cmp_ne_u32 vcc, 0, v{acc0}")

if STAMP:
    for k in range(1, 15): a(f"s_mov_b64 s[{64+2*k}:{65+2*k}], 0")
stamp(0)
a(f"""s_cmp_ge_u32 s2, 256
s_cbranch_scc1 L_end
s_load_dwordx8 s[8:15], s[0:1], 0
s_load_dwordx4 s[16:19], s[0:1], 32
s_load_dwordx2 s[20:21], s[0:1], 48
v_lshrrev_b32 v1, 6, v0
s_and_b32 s22, s2, 7
v_readfirstlane_b32 s3, v1
s_lshr_b32 s23, s2, 3""")
if PADS:
    a("""s_cmp_lt_u32 s3, 4
    s_cbranch_scc1 L_common
    s_mov_b64 exec, 0
    s_cmp_eq_u32 s3, 4
    s_cbranch_scc1 L_pad1
    s_cmp_eq_u32 s3, 5
    s_cbranch_scc1 L_pad2
    s_cmp_eq_u32 s3, 6
    s_cbranch_scc1 L_pad3
    s_branch L_pad4""")
    a.label("L_common")
    a("s_mov_b64 exec, -1")
def pad(n):
    if PADS:
        a.label(f"L_pad{n}")
        a("s_cbranch_execz L_common")
a(f"""
s_mul_i32 s24, s22, 7
s_lshr_b32 s26, s23, 2
s_and_b32 s25, s23, 3
s_add_u32 s27, s22, 3
s_and_b32 s27, s27, 7
s_cmp_eq_u32 s26, 7
s_cselect_b32 s31, 1, 0
s_cselect_b32 s26, s27, s26
s_cmp_eq_u32 s26, 7
s_cbranch_scc1 L_end
s_cmp_eq_u32 s26, s27
s_cselect_b32 s32, 1, 0
s_add_u32 s24, s24, s26
s_mov_b32 s28, 0x05040100
s_mov_b32 s29, 0x07060302
v_and_b32 v2, 7, v0
v_and_b32 v7, 63, v0
s_cmp_gt_u32 s3, 3
s_cbranch_scc1 L_B""")
a(f"""v_lshrrev_b32 v1, 3, v0
s_lshl_b32 s33, s25, 1
s_add_u32 s33, s33, s31
s_mul_i32 s26, s33, {128*7168}
s_lshl_b32 s27, s24, 7
s_add_u32 s26, s26, s27
v_mul_u32_u24 v3, 57344, v1
v_lshl_add_u32 v3, v2, 4, v3
v_add_u32 v96, s26, v3
s_lshl_b32 s27, s33, 8
v_lshlrev_b32 v4, 4, v1
v_add_u32 v4, s27, v4""")
for i in range(1, 8):
    a(f"v_add_u32 v{96+i}, {7168*i}, v96")
G = lambda i: 32 + 4*i
U = lambda i: 64 + 4*i
a("""v_lshlrev_b32 v1, 6, v2
v_bfe_u32 v3, v0, 5, 1
v_lshl_add_u32 v1, v3, 5, v1
v_bfe_u32 v3, v0, 4, 1
v_lshl_add_u32 v1, v3, 4, v1
s_lshl_b32 s26, s3, 9
v_add_u32 v1, s26, v1
s_lshr_b32 s26, s3, 1
s_and_b32 s26, s26, s32
s_waitcnt lgkmcnt(0)
s_cbranch_scc1 L_A_idle""")
stamp(1)
a("global_load_dwordx4 v[8:11], v4, s[8:9]")
seq = []
for i in range(8):
    seq.append(f"global_load_dwordx4 v[{G(i)}:{G(i)+3}], v{96+i}, s[10:11] {NT}")
    seq.append(f"global_load_dwordx4 v[{U(i)}:{U(i)+3}], v{96+i}, s[12:13] {NT}")
for n, l in enumerate(seq):
    if n >= AWIN: a(f"s_waitcnt vmcnt({AWIN-1})")
    a(l)
a(f"s_load_dwordx2 s[40:41], s[20:21], {EOFF}")
stamp(2)
if BAR1 == 0: a("s_barrier")
for j in range(16):
    a(f"v_mov_b32 v{12+j}, 0")
if BAR1 == 1: a("s_waitcnt vmcnt(16)\ns_barrier")
total = 17
for p in range(4):
    i = 2*p
    need = 1 + 2*(i+2)
    a(f"s_waitcnt vmcnt({total-need+1})")
    if BAR1 == 2 + p: a("s_barrier")
    if p == 2: pad(1)
    if p == 0: stamp(3)
    for c in range(4):
        a(f"v_perm_b32 v28, v{G(i+1)+c}, v{G(i)+c}, s28")
        a(f"v_perm_b32 v29, v{G(i+1)+c}, v{G(i)+c}, s29")
        a(f"v_dot2c_f32_bf16 v{12+2*c}, v28, v{8+p}")
        a(f"v_dot2c_f32_bf16 v{13+2*c}, v29, v{8+p}")
    if p == 3:
        a(f"""v_lshlrev_b32 v3, 3, v7
        v_lshlrev_b32 v6, 4, v7
        s_lshl_b32 s26, s24, 13
        s_lshl_b32 s27, s31, 2
        s_add_u32 s27, s27, s25
        s_lshl_b32 s27, s27, 10
        s_add_u32 s27, s27, s26
        v_add_u32 v4, s27, v6
        v_add_u32 v5, {X1L}, v4
        s_add_u32 s26, s26, {X1L}""")
        for j in range(1, 4):
            a(f"""s_add_u32 s33, s25, {j}
            s_and_b32 s33, s33, 3
            s_lshl_b32 s33, s33, 10
            s_add_u32 s33, s33, s26
            v_add_u32 v{96+j}, s33, v6""")
        a(f"""s_add_u32 s33, s26, 4096
        v_add_u32 v96, s33, v6
        v_mov_b32 v100, {LDS_FLAG}
        v_mov_b32 v101, 1
        s_mov_b32 s35, {LFALL}
        s_lshl_b32 s34, s32, 1
        s_sub_u32 s34, 3, s34""")
        for j in range(4):
            a(f"v_permlane32_swap_b32 v{12+j}, v{16+j}")
        for j in range(4):
            a(f"v_add_f32 v{12+j}, v{12+j}, v{16+j}")
        a("""s_nop 0
        v_permlane16_swap_b32 v12, v14
        v_permlane16_swap_b32 v13, v15
        v_add_f32 v12, v12, v14
        v_add_f32 v13, v13, v15
        s_nop 0
        v_add_f32_dpp v16, v12, v12 row_ror:8 row_mask:0xf bank_mask:0xf
        v_add_f32_dpp v18, v13, v13 row_ror:8 row_mask:0xf bank_mask:0xf""")
    a(f"s_waitcnt vmcnt({total-need})")
    if p == 3: stamp(4)
    for c in range(4):
        a(f"v_perm_b32 v28, v{U(i+1)+c}, v{U(i)+c}, s28")
        a(f"v_perm_b32 v29, v{U(i+1)+c}, v{U(i)+c}, s29")
        a(f"v_dot2c_f32_bf16 v{20+2*c}, v28, v{8+p}")
        a(f"v_dot2c_f32_bf16 v{21+2*c}, v29, v{8+p}")
a("s_nop 0")
for j in range(4):
    a(f"v_permlane32_swap_b32 v{20+j}, v{24+j}")
for j in range(4):
    a(f"v_add_f32 v{20+j}, v{20+j}, v{24+j}")
a("""s_nop 0
v_permlane16_swap_b32 v20, v22
v_permlane16_swap_b32 v21, v23
v_add_f32 v20, v20, v22
v_add_f32 v21, v21, v23
s_nop 0
v_add_f32_dpp v17, v20, v20 row_ror:8 row_mask:0xf bank_mask:0xf
v_add_f32_dpp v19, v21, v21 row_ror:8 row_mask:0xf bank_mask:0xf
ds_write_b128 v1, v[16:19]
s_mov_b64 exec, 1
ds_add_rtn_u32 v102, v100, v101 offset:4
s_mov_b64 exec, -1
ds_read_b64 v[20:21], v3
ds_read_b64 v[22:23], v3 offset:512
ds_read_b64 v[24:25], v3 offset:1024
ds_read_b64 v[26:27], v3 offset:1536
s_waitcnt lgkmcnt(0)
v_readfirstlane_b32 s33, v102""")
tag_from_epoch()
a("""v_add_f32 v20, v20, v22
v_add_f32 v21, v21, v23
s_cmp_lg_u32 s33, s34
s_cbranch_scc1 L_A_done
v_add_f32 v24, v24, v26
v_add_f32 v25, v25, v27
v_mov_b32 v33, s40
v_mov_b32 v35, s41
v_add_f32 v32, v20, v24
v_add_f32 v34, v21, v25
global_store_dwordx4 v5, v[32:35], s[20:21]""")
stamp(7)
a("""s_cmp_lg_u32 s31, 0
s_cbranch_scc1 L_A_gpub""")
def x1loop(tag, pol, fail):
    a.label(f"L_x1{tag}")
    a(f"""global_load_dwordx4 v[36:39], v97, s[20:21] {pol}
    global_load_dwordx4 v[40:43], v98, s[20:21] {pol}
    global_load_dwordx4 v[44:47], v99, s[20:21] {pol}
    s_sub_u32 s35, s35, 1
    s_cbranch_scc1 {fail}
    s_cmp_lg_u32 s32, 0
    s_cbranch_scc1 L_x1{tag}_c3
    s_waitcnt vmcnt(0)""")
    tagcheck([36, 40, 44], 28, 29)
    a(f"""v_add_f32 v20, v32, v36
    v_add_f32 v21, v34, v38
    v_add_f32 v24, v40, v44
    v_add_f32 v25, v42, v46
    s_cbranch_vccnz L_x1{tag}""")
def x1c3(tag, pol):
    a.label(f"L_x1{tag}_c3")
    a(f"""global_load_dwordx4 v[48:51], v96, s[20:21] {pol}
    global_load_dwordx4 v[52:55], v96, s[20:21] offset:1024 {pol}
    global_load_dwordx4 v[56:59], v96, s[20:21] offset:2048 {pol}
    global_load_dwordx4 v[60:63], v96, s[20:21] offset:3072 {pol}
    s_waitcnt vmcnt(0)""")
    tagcheck([36, 40, 44, 48, 52, 56, 60], 28, 29)
    a(f"""s_cbranch_vccnz L_x1{tag}
    v_add_f32 v20, v32, v36
    v_add_f32 v21, v34, v38
    v_add_f32 v24, v40, v44
    v_add_f32 v25, v42, v46
    v_add_f32 v22, v48, v52
    v_add_f32 v23, v50, v54
    v_add_f32 v26, v56, v60
    v_add_f32 v27, v58, v62
    v_add_f32 v20, v20, v22
    v_add_f32 v21, v21, v23
    v_add_f32 v24, v24, v26
    v_add_f32 v25, v25, v27
    s_branch L_x1_sum""")
x1loop("a", LLD, "L_x1_fallback")
a.label("L_x1_sum")
pad(2)
stamp(8)
a(f"""v_add_f32 v12, v20, v24
v_add_f32 v16, v21, v25
v_cvt_pk_bf16_f32 v12, v12, v16
v_and_b32 v16, 0xffff0000, v12
v_lshlrev_b32 v12, 16, v12
v_mul_f32 v13, v12, v12
v_mov_b32 v14, 0xc0135761
v_fmac_f32 v14, 0xbdd2d3e8, v13
v_mul_f32 v13, v12, v14
v_exp_f32 v13, v13
v_lshlrev_b32 v15, 1, v7
v_add_f32 v13, 1.0, v13
v_rcp_f32 v13, v13
s_nop 0
v_mul_f32 v12, v12, v13
v_cvt_pk_bf16_f32 v12, v12, v12
v_lshlrev_b32 v12, 16, v12
v_mul_f32 v12, v12, v16
v_cvt_pk_bf16_f32 v12, v12, v12
ds_write_b16 v15, v12 offset:{LDS_H}
ds_write_b32 v100, v101""")
stamp(9)
a.label("L_A_gpub")
a(f"""global_store_dwordx4 v4, v[32:35], s[20:21] sc1
s_cmp_ge_u32 s2, 128
s_cbranch_scc1 L_A_done
s_mov_b32 s35, {SPIN}""")
NBK = 2 if X2P else 1
R = lambda b, k: 36 + 16*b + 4*k
a(f"""s_lshl_b32 s26, s2, 6
s_add_u32 s26, s26, {X2OFF}
v_lshrrev_b32 v1, 2, v7
v_lshlrev_b32 v96, 13, v1
v_and_b32 v1, 3, v7
v_lshl_add_u32 v96, v1, 4, v96
v_add_u32 v96, s26, v96
v_add_u32 v97, 0x20000, v96
v_add_u32 v98, 0x40000, v96
v_add_u32 v99, 0x60000, v96
v_lshlrev_b32 v5, 4, v1
v_bfe_u32 v1, v7, 5, 1
v_lshl_add_u32 v5, v1, 1, v5
s_lshr_b32 s27, s2, 3
s_lshl_b32 s27, s27, 7
s_and_b32 s33, s2, 1
s_lshl_b32 s33, s33, 6
s_add_u32 s27, s27, s33
s_bfe_u32 s33, s2, 0x20001
s_lshl_b32 s33, s33, 2
s_add_u32 s27, s27, s33
v_add_u32 v5, s27, v5
v_and_b32 v1, 28, v7
v_cmp_eq_u32 s[38:39], 0, v1
s_mov_b64 s[52:53], -1
s_mov_b64 s[54:55], -1
s_mov_b64 s[56:57], -1
s_mov_b32 s58, -1
s_mov_b32 s59, 0""")
if not X2P:
    a(f"v_mov_b32 v{R(0,3)}, 0\nv_mov_b32 v{R(0,3)+1}, s40\nv_mov_b32 v{R(0,3)+2}, 0\nv_mov_b32 v{R(0,3)+3}, s41")
    if X2FIRST: a(f"s_sleep {X2FIRST}")
    a.label("L_x2")
    for k in range(4):
        a(f"s_mov_b64 exec, s[{52+2*k}:{53+2*k}]\nglobal_load_dwordx4 v[{R(0,k)}:{R(0,k)+3}], v{96+k}, s[20:21] sc1")
    a("""s_mov_b64 exec, -1
    s_sub_u32 s35, s35, 1
    s_cbranch_scc1 L_end
    s_waitcnt vmcnt(0)""")
    for k in range(4):
        a(f"""v_xor_b32 v{28+k}, s40, v{R(0,k)+1}
        v_bitop3_b32 v{28+k}, v{28+k}, v{R(0,k)+3}, s41 bitop3:0xf6
        v_cmp_ne_u32 s[{52+2*k}:{53+2*k}], 0, v{28+k}""")
    a(f"""v_add_f32 v20, v{R(0,0)}, v{R(0,1)}
    v_add_f32 v21, v{R(0,0)+2}, v{R(0,1)+2}
    s_or_b64 s[60:61], s[52:53], s[54:55]
    s_or_b64 s[62:63], s[56:57], s[58:59]
    v_add_f32 v22, v{R(0,2)}, v{R(0,3)}
    v_add_f32 v23, v{R(0,2)+2}, v{R(0,3)+2}
    s_or_b64 s[60:61], s[60:61], s[62:63]
    s_cbranch_scc1 L_x2
    v_add_f32 v24, v20, v22
    v_add_f32 v25, v21, v23""")
else:
    a("v_mov_b32 v24, 0\nv_mov_b32 v25, 0")
    for b in range(2):
        for k in range(4):
            a(f"v_mov_b32 v{R(b,k)+1}, 0")
    a("s_not_b32 s33, s40")
    for b in range(2):
        for k in range(4):
            a(f"v_mov_b32 v{R(b,k)+1}, s33")
    def issue(b):
        for k in range(4):
            a(f"s_or_b64 exec, s[{52+2*k}:{53+2*k}], 1\nglobal_load_dwordx4 v[{R(b,k)}:{R(b,k)+3}], v{96+k}, s[20:21] sc1")
        a("s_mov_b64 exec, -1")
    def check(b):
        for k in range(4):
            a(f"""v_xor_b32 v{28+k}, s40, v{R(b,k)+1}
            v_bitop3_b32 v{28+k}, v{28+k}, v{R(b,k)+3}, s41 bitop3:0xf6
            v_cmp_eq_u32 s[{44+2*(k%2)}:{45+2*(k%2)}], 0, v{28+k}
            s_and_b64 exec, s[{44+2*(k%2)}:{45+2*(k%2)}], s[{52+2*k}:{53+2*k}]
            v_add_f32 v24, v24, v{R(b,k)}
            v_add_f32 v25, v25, v{R(b,k)+2}
            s_andn2_b64 s[{52+2*k}:{53+2*k}], s[{52+2*k}:{53+2*k}], exec
            s_mov_b64 exec, -1""")
        a("""s_or_b64 s[60:61], s[52:53], s[54:55]
        s_or_b64 s[62:63], s[56:57], s[58:59]
        s_or_b64 s[60:61], s[60:61], s[62:63]
        s_cbranch_scc0 L_x2_fin""")
    if X2FIRST: a(f"s_sleep {X2FIRST}")
    issue(0)
    a(f"s_sleep {X2P}")
    issue(1)
    a.label("L_x2")
    for b in range(2):
        a("s_waitcnt vmcnt(4)")
        check(b)
        issue(b)
    a("""s_sub_u32 s35, s35, 1
    s_cbranch_scc0 L_x2
    s_branch L_end""")
a.label("L_x2_fin")
stamp(10)
a(f"""s_nop 1
v_permlane32_swap_b32 v24, v25
v_add_f32 v20, v24, v25
v_add_f32 v21, v24, v25
s_nop 1
v_permlane16_swap_b32 v20, v21
v_add_f32 v20, v20, v21
s_nop 1
v_add_f32_dpp v20, v20, v20 row_ror:8 row_mask:0xf bank_mask:0xf
s_nop 1
v_add_f32_dpp v20, v20, v20 row_ror:4 row_mask:0xf bank_mask:0xf
v_cvt_pk_bf16_f32 v20, v20, v20
s_mov_b64 exec, s[38:39]
global_store_short v5, v20, s[16:17] {OUTPOL}
s_cmp_lg_u32 s2, 0
s_cbranch_scc1 L_A_done
s_mov_b64 exec, 1
v_mov_b32 v22, s40
v_mov_b32 v23, s41
v_mov_b32 v24, {EOFF}
global_store_dwordx2 v24, v[22:23], s[20:21]""")
a.label("L_A_done")
stamp_flush(11)
a("s_endpgm")
x1c3("a", LLD)
a.label("L_A_idle")
a(f"""v_mov_b32 v28, 0
v_mov_b32 v29, 0
v_mov_b32 v30, 0
v_mov_b32 v31, 0
v_mov_b32 v24, {LDS_FLAG}
ds_write_b128 v1, v[28:31]
ds_write_b64 v24, v[28:29]
s_waitcnt lgkmcnt(0)
s_barrier
s_endpgm""")

a.label("L_B")
pad(3)
D = lambda i: 32 + 4*i
P = lambda p, c, h: 64 + 8*p + 2*c + h
a(f"""s_cmp_lg_u32 s31, 0
s_cbranch_scc1 L_end
v_lshrrev_b32 v1, 3, v7
s_lshl_b32 s26, s24, 17
s_lshl_b32 s27, s25, 9
s_add_u32 s26, s26, s27
s_add_u32 s30, s3, {WROT}
s_and_b32 s30, s30, 3
s_lshl_b32 s27, s30, 7
s_add_u32 s26, s26, s27
s_add_u32 s26, s26, 4096
v_lshlrev_b32 v3, 14, v1
v_lshl_add_u32 v3, v2, 4, v3
v_add_u32 v3, s26, v3
v_add_u32 v4, 8192, v3
v_lshlrev_b32 v5, 4, v1
v_mov_b32 v24, {LDS_FLAG}
v_mov_b32 v26, 0
v_mov_b32 v27, 0
ds_write_b64 v24, v[26:27]
s_waitcnt lgkmcnt(0)
s_load_dwordx2 s[40:41], s[20:21], {EOFF}
s_lshl_b32 s26, s25, 11
s_lshl_b32 s27, s30, 9
s_add_u32 s26, s26, s27
s_lshl_b32 s27, s24, 13
s_add_u32 s26, s26, s27
s_add_u32 s26, s26, {X2OFF}
v_lshlrev_b32 v6, 4, v2
v_bfe_u32 v1, v0, 4, 2
v_lshl_add_u32 v6, v1, 7, v6
v_add_u32 v6, s26, v6""")
if WARM2: a("global_load_dword v26, v6, s[20:21]")
a(f"""v_and_b32 v1, 8, v0
v_cmp_eq_u32 vcc, 0, v1
s_mov_b32 s35, {SPIN*16}""")
for j in range(8):
    a(f"v_mov_b32 v{12+j}, 0")
a("s_waitcnt lgkmcnt(0)")
tag_from_epoch()
a("""v_mov_b32 v21, s40
v_mov_b32 v23, s41""")
stamp(1)
a("s_barrier")
stamp(2)
for i in range(8):
    if i >= BWIN: a(f"s_waitcnt vmcnt({BWIN-1})")
    a(f"global_load_dwordx4 v[{D(i)}:{D(i)+3}], v{3 + i//4}, s[14:15] offset:{(i%4)*2048-4096} {NT}")
stamp(3)
for p in range(4):
    a(f"s_waitcnt vmcnt({6-2*p})")
    for c in range(4):
        a(f"v_perm_b32 v{P(p,c,0)}, v{D(2*p+1)+c}, v{D(2*p)+c}, s28")
        a(f"v_perm_b32 v{P(p,c,1)}, v{D(2*p+1)+c}, v{D(2*p)+c}, s29")
stamp(4)
pad(4)
a.label("L_B_wait")
a(f"""ds_read_b32 v25, v24
ds_read_b128 v[8:11], v5 offset:{LDS_H}
s_sub_u32 s35, s35, 1
s_cbranch_scc1 L_end
s_waitcnt lgkmcnt(1)
v_readfirstlane_b32 s34, v25
s_cmp_eq_u32 s34, 0
s_waitcnt lgkmcnt(0)
s_cbranch_scc1 L_B_wait""")
stamp(5)
for p in range(4):
    for c in range(4):
        a(f"v_dot2c_f32_bf16 v{12+2*c}, v{P(p,c,0)}, v{8+p}")
        a(f"v_dot2c_f32_bf16 v{13+2*c}, v{P(p,c,1)}, v{8+p}")
a("s_nop 2")
for j in range(4):
    a(f"v_permlane32_swap_b32 v{12+j}, v{16+j}")
for j in range(4):
    a(f"v_add_f32 v{12+j}, v{12+j}, v{16+j}")
a("""s_nop 0
v_permlane16_swap_b32 v12, v14
v_permlane16_swap_b32 v13, v15
v_add_f32 v12, v12, v14
v_add_f32 v13, v13, v15
s_nop 0
v_add_f32_dpp v20, v12, v12 row_ror:8 row_mask:0xf bank_mask:0xf
v_add_f32_dpp v22, v13, v13 row_ror:8 row_mask:0xf bank_mask:0xf
s_and_b64 exec, exec, vcc
global_store_dwordx4 v6, v[20:23], s[20:21] sc1""")
stamp(6)
stamp_flush(7)
a.label("L_end")
a("s_endpgm")
a.label("L_x1_fallback")
a(f"""global_store_dwordx4 v4, v[32:35], s[20:21] sc1
s_waitcnt vmcnt(0)
v_subrev_u32 v96, {X1L}, v96
v_subrev_u32 v97, {X1L}, v97
v_subrev_u32 v98, {X1L}, v98
v_subrev_u32 v99, {X1L}, v99
s_mov_b32 s35, {SPIN}""")
x1loop("b", "sc1", "L_end")
a("s_branch L_x1_sum")
x1c3("b", "sc1")
emit_flush()

out = HEADER + f"; @launch grid=(256,1,1) block=(512,1,1) lds=2304\n"
out += '.amdgcn_target "amdgcn-amd-amdhsa--gfx950"\n.text\n'
out += kernel_begin("standalone__geglu_ffn__decode_kernel").replace("p2align 8", "p2align 12") + a.text()
out += '.section .rodata,"a"\n' + kd("standalone__geglu_ffn__decode_kernel", 104, 96 if STAMP else 64)
open(sys.argv[1], "w").write(out)
```

```python
import sys
from gen_common import *
opts = dict(o.split("=") for o in sys.argv[2:])
NT = opts.get("nt", "nt").replace("none", "")
STAMP = int(opts.get("stamp", 0))
OUTPOL = opts.get("outpol", "").replace("_", " ")
SPIN = int(opts.get("spin", 200000))
WROT = int(opts.get("wrot", 3))
BAR1 = int(opts.get("bar1", 0))
LFALL = int(opts.get("lfall", 12))
WARM2 = int(opts.get("warm2", 0))
WARM1 = int(opts.get("warm1", 1))
LLD = opts.get("lld", "sc1").replace("_", " ")
X2FIRST = int(opts.get("x2first", 0))
BWIN = int(opts.get("bwin", 8))
AWIN = int(opts.get("awin", 16))
X2P = int(opts.get("x2p", 0))
X2LD = opts.get("x2ld", "sc1").replace("_", " ")
X2ST = opts.get("x2st", "sc1").replace("_", " ")
X2RS = int(opts.get("x2rs", 0))
X1FIRST = int(opts.get("x1first", 0))
TRIG = int(opts.get("trig", 10))
FLOFF = 0xF8000
FLPOS = int(opts.get("flpos", 0))
FLW = int(opts.get("flw", 1))
TRSL = int(opts.get("trsl", 0))
TRLS = int(opts.get("trls", 0))
RS = int(opts.get("rs", 8192))
X2C = int(opts.get("x2c", 0))
PADS = int(opts.get("pads", 1))
X1G = 0
EOFF = 0x7F008
X1L = 0x80000
X2OFF = 0x100000
NWV = 8
LDS_H = 2048
LDS_FLAG = 2048 + 128

a = Asm()
def stamp(k):
    if STAMP: a(f"s_memrealtime s[{64+2*k}:{65+2*k}]")
def stamp_flush(last):
    if not STAMP: return
    a("s_waitcnt vmcnt(0) lgkmcnt(0)")
    a(f"s_memrealtime s[{64+2*last}:{65+2*last}]")
    a("s_branch L_flush")
def emit_flush():
    if not STAMP: return
    a.label("L_flush")
    a(f"""s_sleep 127
    s_sleep 127
    s_mul_i32 s50, s2, {NWV}
    s_add_u32 s50, s50, s3
    s_lshl_b32 s50, s50, 7
    s_add_u32 s50, s50, 0x8000000
    s_add_u32 s48, s20, s50
    s_addc_u32 s49, s21, 0
    s_mov_b64 exec, -1
    v_lshlrev_b32 v1, 2, v7
    s_waitcnt lgkmcnt(0)
    s_getreg_b32 s94, hwreg(HW_REG_HW_ID)
    s_getreg_b32 s95, hwreg(HW_REG_XCC_ID)""")
    for k in range(32):
        a(f"v_writelane_b32 v2, s{64+k}, {k}")
    a("""s_mov_b64 exec, 0xffffffff
    global_store_dword v1, v2, s[48:49]
    s_endpgm""")
def cid(r):
    a(f"""s_and_b32 {r}, s2, 0x70
    s_lshl_b32 s37, s22, 1
    s_or_b32 {r}, {r}, s37
    s_bfe_u32 s37, s2, 0x10003
    s_or_b32 {r}, {r}, s37""")
def tag_from_epoch():
    a("""s_add_u32 s40, s40, 0x7F4A7C15
    s_add_u32 s41, s41, 0x9E3779B9""")
def tagcheck(quads, acc0, acc1):
    first = True
    for q in quads:
        if first:
            a(f"v_xor_b32 v{acc0}, s40, v{q+1}\nv_xor_b32 v{acc1}, s41, v{q+3}")
            first = False
        else:
            a(f"v_bitop3_b32 v{acc0}, v{acc0}, v{q+1}, s40 bitop3:0xf6\nv_bitop3_b32 v{acc1}, v{acc1}, v{q+3}, s41 bitop3:0xf6")
    a(f"v_or_b32 v{acc0}, v{acc0}, v{acc1}\nv_cmp_ne_u32 vcc, 0, v{acc0}")

if STAMP:
    for k in range(1, 15): a(f"s_mov_b64 s[{64+2*k}:{65+2*k}], 0")
stamp(0)
a(f"""s_cmp_ge_u32 s2, 256
s_cbranch_scc1 L_end
s_load_dwordx8 s[8:15], s[0:1], 0
s_load_dwordx4 s[16:19], s[0:1], 32
s_load_dwordx2 s[20:21], s[0:1], 48
v_lshrrev_b32 v1, 6, v0
s_and_b32 s22, s2, 7
v_readfirstlane_b32 s3, v1
s_lshr_b32 s23, s2, 3""")
if PADS:
    a("""s_cmp_lt_u32 s3, 4
    s_cbranch_scc1 L_common
    s_mov_b64 exec, 0
    s_cmp_eq_u32 s3, 4
    s_cbranch_scc1 L_pad1
    s_cmp_eq_u32 s3, 5
    s_cbranch_scc1 L_pad2
    s_cmp_eq_u32 s3, 6
    s_cbranch_scc1 L_pad3
    s_branch L_pad4""")
    a.label("L_common")
    a("s_mov_b64 exec, -1")
def pad(n):
    if PADS:
        a.label(f"L_pad{n}")
        a("s_cbranch_execz L_common")
a(f"""
s_mul_i32 s24, s22, 7
s_lshr_b32 s26, s23, 2
s_and_b32 s25, s23, 3
s_add_u32 s27, s22, 3
s_and_b32 s27, s27, 7
s_cmp_eq_u32 s26, 7
s_cselect_b32 s31, 1, 0
s_cselect_b32 s26, s27, s26
s_cmp_eq_u32 s26, 7
s_cbranch_scc1 L_end
s_cmp_eq_u32 s26, s27
s_cselect_b32 s32, 1, 0
s_add_u32 s24, s24, s26
s_mov_b32 s28, 0x05040100
s_mov_b32 s29, 0x07060302
v_and_b32 v2, 7, v0
v_and_b32 v7, 63, v0
s_cmp_gt_u32 s3, 3
s_cbranch_scc1 L_B""")
a(f"""v_lshrrev_b32 v1, 3, v0
s_lshl_b32 s33, s25, 1
s_add_u32 s33, s33, s31
s_mul_i32 s26, s33, {128*7168}
s_lshl_b32 s27, s24, 7
s_add_u32 s26, s26, s27
v_mul_u32_u24 v3, 57344, v1
v_lshl_add_u32 v3, v2, 4, v3
v_add_u32 v96, s26, v3
s_lshl_b32 s27, s33, 8
v_lshlrev_b32 v4, 4, v1
v_add_u32 v4, s27, v4""")
for i in range(1, 8):
    a(f"v_add_u32 v{96+i}, {7168*i}, v96")
G = lambda i: 32 + 4*i
U = lambda i: 64 + 4*i
a("""v_lshlrev_b32 v1, 6, v2
v_bfe_u32 v3, v0, 5, 1
v_lshl_add_u32 v1, v3, 5, v1
v_bfe_u32 v3, v0, 4, 1
v_lshl_add_u32 v1, v3, 4, v1
s_lshl_b32 s26, s3, 9
v_add_u32 v1, s26, v1
s_lshr_b32 s26, s3, 1
s_and_b32 s26, s26, s32
s_waitcnt lgkmcnt(0)
s_cbranch_scc1 L_A_idle""")
stamp(1)
a("global_load_dwordx4 v[8:11], v4, s[8:9]")
seq = []
for i in range(8):
    seq.append(f"global_load_dwordx4 v[{G(i)}:{G(i)+3}], v{96+i}, s[10:11] {NT}")
    seq.append(f"global_load_dwordx4 v[{U(i)}:{U(i)+3}], v{96+i}, s[12:13] {NT}")
for n, l in enumerate(seq):
    if n >= AWIN: a(f"s_waitcnt vmcnt({AWIN-1})")
    a(l)
a(f"s_load_dwordx2 s[40:41], s[20:21], {EOFF}")
stamp(2)
if BAR1 == 0: a("s_barrier")
for j in range(16):
    a(f"v_mov_b32 v{12+j}, 0")
if BAR1 == 1: a("s_waitcnt vmcnt(16)\ns_barrier")
total = 17
for p in range(4):
    i = 2*p
    need = 1 + 2*(i+2)
    a(f"s_waitcnt vmcnt({total-need+1})")
    if BAR1 == 2 + p: a("s_barrier")
    if p == 2: pad(1)
    if p == 0: stamp(3)
    for c in range(4):
        a(f"v_perm_b32 v28, v{G(i+1)+c}, v{G(i)+c}, s28")
        a(f"v_perm_b32 v29, v{G(i+1)+c}, v{G(i)+c}, s29")
        a(f"v_dot2c_f32_bf16 v{12+2*c}, v28, v{8+p}")
        a(f"v_dot2c_f32_bf16 v{13+2*c}, v29, v{8+p}")
    if p == 3:
        a(f"""v_lshlrev_b32 v3, 3, v7
        v_lshlrev_b32 v6, 4, v7
        s_lshl_b32 s26, s24, 13
        s_lshl_b32 s27, s31, 2
        s_add_u32 s27, s27, s25
        s_lshl_b32 s27, s27, 10
        s_add_u32 s27, s27, s26
        v_add_u32 v4, s27, v6
        v_add_u32 v5, {X1L}, v4
        s_add_u32 s26, s26, {X1L}""")
        for j in range(1, 4):
            a(f"""s_add_u32 s33, s25, {j}
            s_and_b32 s33, s33, 3
            s_lshl_b32 s33, s33, 10
            s_add_u32 s33, s33, s26
            v_add_u32 v{96+j}, s33, v6""")
        a(f"""s_add_u32 s33, s26, 4096
        v_add_u32 v96, s33, v6
        v_mov_b32 v100, {LDS_FLAG}
        v_mov_b32 v101, 1
        s_mov_b32 s35, {LFALL}
        s_lshl_b32 s34, s32, 1
        s_sub_u32 s34, 3, s34""")
        for j in range(4):
            a(f"v_permlane32_swap_b32 v{12+j}, v{16+j}")
        for j in range(4):
            a(f"v_add_f32 v{12+j}, v{12+j}, v{16+j}")
        a("""s_nop 0
        v_permlane16_swap_b32 v12, v14
        v_permlane16_swap_b32 v13, v15
        v_add_f32 v12, v12, v14
        v_add_f32 v13, v13, v15
        s_nop 0
        v_add_f32_dpp v16, v12, v12 row_ror:8 row_mask:0xf bank_mask:0xf
        v_add_f32_dpp v18, v13, v13 row_ror:8 row_mask:0xf bank_mask:0xf""")
    a(f"s_waitcnt vmcnt({total-need})")
    if p == 3 and BAR1 == 6: a("s_barrier")
    if p == 3: stamp(4)
    for c in range(4):
        a(f"v_perm_b32 v28, v{U(i+1)+c}, v{U(i)+c}, s28")
        a(f"v_perm_b32 v29, v{U(i+1)+c}, v{U(i)+c}, s29")
        a(f"v_dot2c_f32_bf16 v{20+2*c}, v28, v{8+p}")
        a(f"v_dot2c_f32_bf16 v{21+2*c}, v29, v{8+p}")
a("s_nop 0")
for j in range(4):
    a(f"v_permlane32_swap_b32 v{20+j}, v{24+j}")
for j in range(4):
    a(f"v_add_f32 v{20+j}, v{20+j}, v{24+j}")
a("""s_nop 0
v_permlane16_swap_b32 v20, v22
v_permlane16_swap_b32 v21, v23
v_add_f32 v20, v20, v22
v_add_f32 v21, v21, v23
s_nop 0
v_add_f32_dpp v17, v20, v20 row_ror:8 row_mask:0xf bank_mask:0xf
v_add_f32_dpp v19, v21, v21 row_ror:8 row_mask:0xf bank_mask:0xf
ds_write_b128 v1, v[16:19]
s_mov_b64 exec, 1
ds_add_rtn_u32 v102, v100, v101 offset:4
s_mov_b64 exec, -1
ds_read_b64 v[20:21], v3
ds_read_b64 v[22:23], v3 offset:512
ds_read_b64 v[24:25], v3 offset:1024
ds_read_b64 v[26:27], v3 offset:1536
s_waitcnt lgkmcnt(0)
v_readfirstlane_b32 s33, v102""")
tag_from_epoch()
a("""v_add_f32 v20, v20, v22
v_add_f32 v21, v21, v23
s_cmp_lg_u32 s33, s34
s_cbranch_scc1 L_A_done
v_add_f32 v24, v24, v26
v_add_f32 v25, v25, v27
v_mov_b32 v33, s40
v_mov_b32 v35, s41
v_add_f32 v32, v20, v24
v_add_f32 v34, v21, v25
global_store_dwordx4 v5, v[32:35], s[20:21]""")
stamp(7)
a("""s_cmp_lg_u32 s31, 0
s_cbranch_scc1 L_A_gpub""")
if X1FIRST: a(f"s_sleep {X1FIRST}")
def x1loop(tag, pol, fail):
    a.label(f"L_x1{tag}")
    a(f"""global_load_dwordx4 v[36:39], v97, s[20:21] {pol}
    global_load_dwordx4 v[40:43], v98, s[20:21] {pol}
    global_load_dwordx4 v[44:47], v99, s[20:21] {pol}
    s_sub_u32 s35, s35, 1
    s_cbranch_scc1 {fail}
    s_cmp_lg_u32 s32, 0
    s_cbranch_scc1 L_x1{tag}_c3
    s_waitcnt vmcnt(0)""")
    tagcheck([36, 40, 44], 28, 29)
    a(f"""v_add_f32 v20, v32, v36
    v_add_f32 v21, v34, v38
    v_add_f32 v24, v40, v44
    v_add_f32 v25, v42, v46
    s_cbranch_vccnz L_x1{tag}""")
def x1c3(tag, pol):
    a.label(f"L_x1{tag}_c3")
    a(f"""global_load_dwordx4 v[48:51], v96, s[20:21] {pol}
    global_load_dwordx4 v[52:55], v96, s[20:21] offset:1024 {pol}
    global_load_dwordx4 v[56:59], v96, s[20:21] offset:2048 {pol}
    global_load_dwordx4 v[60:63], v96, s[20:21] offset:3072 {pol}
    s_waitcnt vmcnt(0)""")
    tagcheck([36, 40, 44, 48, 52, 56, 60], 28, 29)
    a(f"""s_cbranch_vccnz L_x1{tag}
    v_add_f32 v20, v32, v36
    v_add_f32 v21, v34, v38
    v_add_f32 v24, v40, v44
    v_add_f32 v25, v42, v46
    v_add_f32 v22, v48, v52
    v_add_f32 v23, v50, v54
    v_add_f32 v26, v56, v60
    v_add_f32 v27, v58, v62
    v_add_f32 v20, v20, v22
    v_add_f32 v21, v21, v23
    v_add_f32 v24, v24, v26
    v_add_f32 v25, v25, v27
    s_branch L_x1_sum""")
x1loop("a", LLD, "L_x1_fallback")
a.label("L_x1_sum")
pad(2)
stamp(8)
a(f"""v_add_f32 v12, v20, v24
v_add_f32 v16, v21, v25
v_cvt_pk_bf16_f32 v12, v12, v16
v_and_b32 v16, 0xffff0000, v12
v_lshlrev_b32 v12, 16, v12
v_mul_f32 v13, v12, v12
v_mov_b32 v14, 0xc0135761
v_fmac_f32 v14, 0xbdd2d3e8, v13
v_mul_f32 v13, v12, v14
v_exp_f32 v13, v13
v_lshlrev_b32 v15, 1, v7
v_add_f32 v13, 1.0, v13
v_rcp_f32 v13, v13
s_nop 0
v_mul_f32 v12, v12, v13
v_cvt_pk_bf16_f32 v12, v12, v12
v_lshlrev_b32 v12, 16, v12
v_mul_f32 v12, v12, v16
v_cvt_pk_bf16_f32 v12, v12, v12
ds_write_b16 v15, v12 offset:{LDS_H}
ds_write_b32 v100, v101""")
stamp(9)
a.label("L_A_gpub")
a(f"""global_store_dwordx4 v4, v[32:35], s[20:21] sc1
s_cmp_ge_u32 s2, 128
s_cbranch_scc1 L_A_done
s_mov_b32 s35, {SPIN}""")
NBK = 2 if X2P else 1
R = lambda b, k: 36 + 16*b + 4*k
cid("s36")
if X2C:
    a(f"""s_lshl_b32 s26, s36, 12
    s_add_u32 s26, s26, {X2OFF}
    v_lshlrev_b32 v96, 4, v7
    v_add_u32 v96, s26, v96
    v_add_u32 v97, 1024, v96
    v_add_u32 v98, 2048, v96
    v_add_u32 v99, 3072, v96
    v_and_b32 v1, 3, v7""")
else:
    a(f"""s_lshl_b32 s26, s36, 6
s_add_u32 s26, s26, {X2OFF}
v_lshrrev_b32 v1, 2, v7
v_mul_u32_u24 v96, {RS}, v1
v_and_b32 v1, 3, v7
v_lshl_add_u32 v96, v1, 4, v96
v_add_u32 v96, s26, v96
v_add_u32 v97, {16*RS}, v96
v_add_u32 v98, {32*RS}, v96
v_add_u32 v99, {48*RS}, v96""")
a(f"""v_lshlrev_b32 v5, 4, v1
v_bfe_u32 v1, v7, 5, 1
v_lshl_add_u32 v5, v1, 1, v5
s_lshr_b32 s27, s36, 3
s_lshl_b32 s27, s27, 7
s_and_b32 s33, s36, 1
s_lshl_b32 s33, s33, 6
s_add_u32 s27, s27, s33
s_bfe_u32 s33, s36, 0x20001
s_lshl_b32 s33, s33, 2
s_add_u32 s27, s27, s33
v_add_u32 v5, s27, v5
v_and_b32 v1, 28, v7
v_cmp_eq_u32 s[38:39], 0, v1
s_mov_b64 s[52:53], -1
s_mov_b64 s[54:55], -1
s_mov_b64 s[56:57], -1
s_mov_b32 s58, -1
s_mov_b32 s59, 0""")
if not X2P:
    a(f"v_mov_b32 v{R(0,3)}, 0\nv_mov_b32 v{R(0,3)+1}, s40\nv_mov_b32 v{R(0,3)+2}, 0\nv_mov_b32 v{R(0,3)+3}, s41")
    if TRIG:
        a(f"""s_lshl_b32 s26, s22, 10
        s_add_u32 s26, s26, {FLOFF}
        v_add_u32 v6, s26, v3
        s_mov_b32 s34, {TRIG}""")
        a("s_mov_b64 exec, 0x3fff" if FLW else "s_mov_b32 exec_hi, 0x00ffffff")
        if TRSL: a(f"s_sleep {TRSL}")
        a.label("L_trig")
        if TRLS: a(f"s_sleep {TRLS}")
        a("""global_load_dwordx2 v[28:29], v6, s[20:21] sc1
        s_sub_u32 s34, s34, 1
        s_cbranch_scc1 L_trig_done
        s_waitcnt vmcnt(0)
        v_xor_b32 v28, s40, v28
        v_bitop3_b32 v28, v28, v29, s40 bitop3:0xf6
        v_cmp_ne_u32 vcc, 0, v28
        s_cbranch_vccnz L_trig""")
        a.label("L_trig_done")
    if X2FIRST: a(f"s_sleep {X2FIRST}")
    stamp(12)
    a.label("L_x2")
    if STAMP:
        a("""s_waitcnt lgkmcnt(0)
        s_mov_b64 s[76:77], s[92:93]
        s_mov_b64 s[92:93], s[90:91]
        s_memrealtime s[90:91]""")
    for k in range(4):
        a(f"s_mov_b64 exec, s[{52+2*k}:{53+2*k}]\nglobal_load_dwordx4 v[{R(0,k)}:{R(0,k)+3}], v{96+k}, s[20:21] {X2LD}")
    a("""s_mov_b64 exec, -1
    s_sub_u32 s35, s35, 1
    s_cbranch_scc1 L_end
    s_waitcnt vmcnt(0)""")
    for k in range(4):
        a(f"""v_xor_b32 v{28+k}, s40, v{R(0,k)+1}
        v_bitop3_b32 v{28+k}, v{28+k}, v{R(0,k)+3}, s41 bitop3:0xf6
        v_cmp_ne_u32 s[{52+2*k}:{53+2*k}], 0, v{28+k}""")
    a(f"""v_add_f32 v20, v{R(0,0)}, v{R(0,1)}
    v_add_f32 v21, v{R(0,0)+2}, v{R(0,1)+2}
    s_or_b64 s[60:61], s[52:53], s[54:55]
    s_or_b64 s[62:63], s[56:57], s[58:59]
    v_add_f32 v22, v{R(0,2)}, v{R(0,3)}
    v_add_f32 v23, v{R(0,2)+2}, v{R(0,3)+2}
    s_or_b64 s[60:61], s[60:61], s[62:63]
    s_cbranch_scc1 L_x2
    v_add_f32 v24, v20, v22
    v_add_f32 v25, v21, v23""")
else:
    a("v_mov_b32 v24, 0\nv_mov_b32 v25, 0")
    for b in range(2):
        for k in range(4):
            a(f"v_mov_b32 v{R(b,k)+1}, 0")
    a("s_not_b32 s33, s40")
    for b in range(2):
        for k in range(4):
            a(f"v_mov_b32 v{R(b,k)+1}, s33")
    def issue(b):
        for k in range(4):
            a(f"s_or_b64 exec, s[{52+2*k}:{53+2*k}], 1\nglobal_load_dwordx4 v[{R(b,k)}:{R(b,k)+3}], v{96+k}, s[20:21] sc1")
        a("s_mov_b64 exec, -1")
    def check(b):
        for k in range(4):
            a(f"""v_xor_b32 v{28+k}, s40, v{R(b,k)+1}
            v_bitop3_b32 v{28+k}, v{28+k}, v{R(b,k)+3}, s41 bitop3:0xf6
            v_cmp_eq_u32 s[{44+2*(k%2)}:{45+2*(k%2)}], 0, v{28+k}
            s_and_b64 exec, s[{44+2*(k%2)}:{45+2*(k%2)}], s[{52+2*k}:{53+2*k}]
            v_add_f32 v24, v24, v{R(b,k)}
            v_add_f32 v25, v25, v{R(b,k)+2}
            s_andn2_b64 s[{52+2*k}:{53+2*k}], s[{52+2*k}:{53+2*k}], exec
            s_mov_b64 exec, -1""")
        a("""s_or_b64 s[60:61], s[52:53], s[54:55]
        s_or_b64 s[62:63], s[56:57], s[58:59]
        s_or_b64 s[60:61], s[60:61], s[62:63]
        s_cbranch_scc0 L_x2_fin""")
    if X2FIRST: a(f"s_sleep {X2FIRST}")
    issue(0)
    a(f"s_sleep {X2P}")
    issue(1)
    a.label("L_x2")
    for b in range(2):
        a("s_waitcnt vmcnt(4)")
        check(b)
        issue(b)
    a("""s_sub_u32 s35, s35, 1
    s_cbranch_scc0 L_x2
    s_branch L_end""")
a.label("L_x2_fin")
stamp(10)
a(f"""s_nop 1
v_permlane32_swap_b32 v24, v25
v_add_f32 v20, v24, v25
v_add_f32 v21, v24, v25
s_nop 1
v_permlane16_swap_b32 v20, v21
v_add_f32 v20, v20, v21
s_nop 1
v_add_f32_dpp v20, v20, v20 row_ror:8 row_mask:0xf bank_mask:0xf
s_nop 1
v_add_f32_dpp v20, v20, v20 row_ror:4 row_mask:0xf bank_mask:0xf
v_cvt_pk_bf16_f32 v20, v20, v20
s_mov_b64 exec, s[38:39]
global_store_short v5, v20, s[16:17] {OUTPOL}
s_cmp_lg_u32 s2, 0
s_cbranch_scc1 L_A_done
s_mov_b64 exec, 1
v_mov_b32 v22, s40
v_mov_b32 v23, s41
v_mov_b32 v24, {EOFF}
global_store_dwordx2 v24, v[22:23], s[20:21]""")
a.label("L_A_done")
stamp_flush(11)
a("s_endpgm")
x1c3("a", LLD)
a.label("L_A_idle")
a(f"""v_mov_b32 v28, 0
v_mov_b32 v29, 0
v_mov_b32 v30, 0
v_mov_b32 v31, 0
v_mov_b32 v24, {LDS_FLAG}
ds_write_b128 v1, v[28:31]
ds_write_b64 v24, v[28:29]""")
if WARM1 == 2:
    a(f"""s_cmp_eq_u32 s31, 0
    s_cbranch_scc1 L_A_idle2
    s_lshl_b32 s26, s24, 13
    s_lshl_b32 s27, s25, 10
    s_add_u32 s26, s26, s27
    s_add_u32 s26, s26, {X1L+4096}
    v_lshlrev_b32 v27, 4, v7
    v_add_u32 v27, s26, v27
    global_store_dwordx4 v27, v[28:31], s[20:21]""")
    a.label("L_A_idle2")
a("""s_waitcnt vmcnt(0) lgkmcnt(0)
s_barrier
s_endpgm""")

a.label("L_B")
pad(3)
D = lambda i: 32 + 4*i
P = lambda p, c, h: 64 + 8*p + 2*c + h
a(f"""s_cmp_lg_u32 s31, 0
s_cbranch_scc1 L_end
v_lshrrev_b32 v1, 3, v7
s_lshl_b32 s26, s24, 17
s_lshl_b32 s27, s25, 9
s_add_u32 s26, s26, s27
s_add_u32 s30, s3, {WROT}
s_and_b32 s30, s30, 3
s_lshl_b32 s27, s30, 7
s_add_u32 s26, s26, s27
s_add_u32 s26, s26, 4096
v_lshlrev_b32 v3, 14, v1
v_lshl_add_u32 v3, v2, 4, v3
v_add_u32 v3, s26, v3
v_add_u32 v4, 8192, v3
v_lshlrev_b32 v5, 4, v1
v_mov_b32 v24, {LDS_FLAG}
v_mov_b32 v26, 0
v_mov_b32 v27, 0
ds_write_b64 v24, v[26:27]
s_waitcnt lgkmcnt(0)
s_load_dwordx2 s[40:41], s[20:21], {EOFF}
""")
if X2C:
    a(f"""s_lshl_b32 s26, s25, 17
    s_lshl_b32 s27, s30, 15
    s_add_u32 s26, s26, s27
    s_lshl_b32 s27, s24, 6
    s_add_u32 s26, s26, s27
    s_lshl_b32 s27, s24, 13
    s_add_u32 s26, s26, {X2OFF}
    v_and_b32 v6, 3, v0
    v_lshlrev_b32 v6, 4, v6
    v_bfe_u32 v1, v0, 2, 1
    v_lshl_add_u32 v6, v1, 12, v6
    v_bfe_u32 v1, v0, 4, 2
    v_lshl_add_u32 v6, v1, 13, v6
    v_add_u32 v6, s26, v6""")
else:
    a(f"""s_lshl_b32 s26, s25, 11
s_lshl_b32 s27, s30, 9
s_add_u32 s26, s26, s27
s_mul_i32 s27, s24, {RS}
s_add_u32 s26, s26, s27
s_lshl_b32 s27, s24, 13
s_add_u32 s26, s26, {X2OFF}
v_lshlrev_b32 v6, 4, v2
v_bfe_u32 v1, v0, 4, 2
v_lshl_add_u32 v6, v1, 7, v6
v_add_u32 v6, s26, v6""")
if WARM2 == 1: a("global_load_dword v26, v6, s[20:21]")
W2POL = opts.get("w2pol", "sc1").replace("none", "").replace("_", " ")
def warm_cons():
    a(f"""s_cmp_lg_u32 s3, 5
    s_cbranch_scc1 L_B_nowarm2
    s_cmp_ge_u32 s2, 128
    s_cbranch_scc1 L_B_nowarm2""")
    cid("s36")
    a(f"""s_lshl_b32 s26, s36, 6
    s_add_u32 s26, s26, {X2OFF}
    v_mul_u32_u24 v27, {RS}, v7
    v_add_u32 v27, s26, v27
    s_mov_b32 exec_hi, 0x00ffffff
    global_load_dword v26, v27, s[20:21] {W2POL}
    s_mov_b32 exec_hi, -1""")
    a.label("L_B_nowarm2")
if WARM2 == 2: warm_cons()
if TRIG:
    a(f"""s_lshl_b32 s26, s22, 10
    s_add_u32 s26, s26, {FLOFF}
    s_lshl_b32 s37, s23, {2 if FLW else 4}
    s_add_u32 s26, s26, s37
    s_and_b32 s37, s3, {0 if FLW else 3}
    s_lshl_b32 s37, s37, 2
    s_add_u32 s26, s26, s37
    v_mov_b32 v28, s26
    s_mov_b64 exec, 1
    global_load_dword v26, v28, s[20:21] sc1
    s_mov_b64 exec, -1""")
if WARM1 == 1:
    a(f"""s_cmp_lg_u32 s3, 4
    s_cbranch_scc1 L_B_nowarm
    s_lshl_b32 s26, s25, 10
    s_add_u32 s26, s26, s27
    s_add_u32 s26, s26, {X1L}
    v_lshlrev_b32 v27, 6, v7
    v_and_b32 v27, 0x3ff, v27
    v_bfe_u32 v26, v7, 4, 1
    v_lshl_add_u32 v27, v26, 12, v27
    v_add_u32 v27, s26, v27
    s_lshl_b32 s26, s32, 4
    s_add_u32 s26, s26, 16
    s_bfm_b64 exec, s26, 0
    global_load_dword v26, v27, s[20:21] {W2POL}
    s_mov_b64 exec, -1""")
    a.label("L_B_nowarm")
if WARM1 == 2:
    a(f"""s_cmp_gt_u32 s3, 4
    s_cbranch_scc1 L_B_nowarm
    s_lshl_b32 s26, s25, 10
    s_add_u32 s26, s26, s27
    s_add_u32 s26, s26, {X1L}
    v_lshlrev_b32 v27, 4, v7
    v_add_u32 v27, s26, v27
    v_mov_b32 v28, 0
    v_mov_b32 v29, 0
    v_mov_b32 v30, 0
    v_mov_b32 v31, 0
    global_store_dwordx4 v27, v[28:31], s[20:21]
    s_waitcnt vmcnt(0)""")
    a.label("L_B_nowarm")
a(f"""v_and_b32 v1, 8, v0
v_cmp_eq_u32 vcc, 0, v1
s_mov_b32 s35, {SPIN*16}""")
for j in range(8):
    a(f"v_mov_b32 v{12+j}, 0")
a("s_waitcnt lgkmcnt(0)")
tag_from_epoch()
a("""v_mov_b32 v21, s40
v_mov_b32 v23, s41""")
stamp(1)
a("s_barrier")
stamp(2)
for i in range(8):
    if i >= BWIN: a(f"s_waitcnt vmcnt({BWIN-1})")
    a(f"global_load_dwordx4 v[{D(i)}:{D(i)+3}], v{3 + i//4}, s[14:15] offset:{(i%4)*2048-4096} {NT}")
stamp(3)
for p in range(4):
    a(f"s_waitcnt vmcnt({6-2*p})")
    for c in range(4):
        a(f"v_perm_b32 v{P(p,c,0)}, v{D(2*p+1)+c}, v{D(2*p)+c}, s28")
        a(f"v_perm_b32 v{P(p,c,1)}, v{D(2*p+1)+c}, v{D(2*p)+c}, s29")
stamp(4)
pad(4)
a.label("L_B_wait")
a(f"""ds_read_b32 v25, v24
ds_read_b128 v[8:11], v5 offset:{LDS_H}
s_sub_u32 s35, s35, 1
s_cbranch_scc1 L_end
s_waitcnt lgkmcnt(1)
v_readfirstlane_b32 s34, v25
s_cmp_eq_u32 s34, 0
s_waitcnt lgkmcnt(0)
s_cbranch_scc1 L_B_wait""")
stamp(5)
if TRIG and FLPOS == 1: a("global_store_dword v28, v21, s[20:21]")
for p in range(4):
    for c in range(4):
        a(f"v_dot2c_f32_bf16 v{12+2*c}, v{P(p,c,0)}, v{8+p}")
        a(f"v_dot2c_f32_bf16 v{13+2*c}, v{P(p,c,1)}, v{8+p}")
if TRIG and FLPOS == 2: a("global_store_dword v28, v21, s[20:21]\ns_nop 1")
else: a("s_nop 2")
for j in range(4):
    a(f"v_permlane32_swap_b32 v{12+j}, v{16+j}")
for j in range(4):
    a(f"v_add_f32 v{12+j}, v{12+j}, v{16+j}")
a("""s_nop 0
v_permlane16_swap_b32 v12, v14
v_permlane16_swap_b32 v13, v15
v_add_f32 v12, v12, v14
v_add_f32 v13, v13, v15
s_nop 0
v_add_f32_dpp v20, v12, v12 row_ror:8 row_mask:0xf bank_mask:0xf
v_add_f32_dpp v22, v13, v13 row_ror:8 row_mask:0xf bank_mask:0xf
s_and_b64 exec, exec, vcc""")
a(f"global_store_dwordx4 v6, v[20:23], s[20:21] {X2ST}")
if TRIG and FLPOS == 0:
    if FLW: a("s_cmp_lg_u32 s3, 7\ns_cbranch_scc1 L_B_nofl")
    a("""s_mov_b64 exec, 1
    global_store_dword v28, v21, s[20:21]""")
    if FLW: a.label("L_B_nofl")
stamp(6)
stamp_flush(7)
a.label("L_end")
a("s_endpgm")
a.label("L_x1_fallback")
a(f"""global_store_dwordx4 v4, v[32:35], s[20:21] sc1
s_waitcnt vmcnt(0)
v_subrev_u32 v96, {X1L}, v96
v_subrev_u32 v97, {X1L}, v97
v_subrev_u32 v98, {X1L}, v98
v_subrev_u32 v99, {X1L}, v99
s_mov_b32 s35, {SPIN}""")
x1loop("b", "sc1", "L_end")
a("s_branch L_x1_sum")
x1c3("b", "sc1")
emit_flush()

out = HEADER + f"; @launch grid=(256,1,1) block=(512,1,1) lds=2304\n"
out += '.amdgcn_target "amdgcn-amd-amdhsa--gfx950"\n.text\n'
out += kernel_begin("standalone__geglu_ffn__decode_kernel").replace("p2align 8", "p2align 12") + a.text()
out += '.section .rodata,"a"\n' + kd("standalone__geglu_ffn__decode_kernel", 104, 96 if STAMP else 64)
open(sys.argv[1], "w").write(out)
```

```python
import sys
from gen_common import *
opts = dict(o.split("=") for o in sys.argv[2:])
NT = opts.get("nt", "nt").replace("none", "")
STAMP = int(opts.get("stamp", 0))
SPIN = int(opts.get("spin", 200000))
WROT = int(opts.get("wrot", 3))
LFALL = int(opts.get("lfall", 12))
TRIG = int(opts.get("trig", 12))
WARM1 = int(opts.get("warm1", 1))
WOUT = int(opts.get("wout", 1))
CLEAN = int(opts.get("clean", 1))
X2FIRST = int(opts.get("x2first", 0))
HLOC = int(opts.get("hloc", 0))
GPOS = int(opts.get("gpos", 0))
HTRIG = int(opts.get("htrig", 32))
FLPOS = int(opts.get("flpos", 0))
NCSL = int(opts.get("ncsl", 0))
FLB4 = int(opts.get("flb4", 0))
WARM2 = int(opts.get("warm2", 0))
OMAP = int(opts.get("omap", 1))
ASPLIT = [int(x) for x in opts.get("asplit", "0,4,8,12").split(",")]
BSPLIT = [int(x) for x in opts.get("bsplit", "0,2,4,6").split(",")]
X1OFF = 0
EOFF = 0x7F008
FLOFF = 0x78000
X2OFF = 0x80000
NWV = 8
LDS_H = 2048
LDS_FLAG = 2048 + 128

a = Asm()
def C(s): a.lines.append("    ; " + s)
def stamp(k):
    if STAMP: a(f"s_memrealtime s[{64+2*k}:{65+2*k}]")
def stamp_flush(last):
    if not STAMP: return
    a("s_waitcnt vmcnt(0) lgkmcnt(0)")
    a(f"s_memrealtime s[{64+2*last}:{65+2*last}]")
    a("s_branch L_flush")
def emit_flush():
    if not STAMP: return
    a.label("L_flush")
    a(f"""s_sleep 127
    s_sleep 127
    s_mul_i32 s50, s2, {NWV}
    s_add_u32 s50, s50, s3
    s_lshl_b32 s50, s50, 7
    s_add_u32 s50, s50, 0x8000000
    s_add_u32 s48, s20, s50
    s_addc_u32 s49, s21, 0
    s_mov_b64 exec, -1
    v_lshlrev_b32 v1, 2, v7
    s_waitcnt lgkmcnt(0)
    s_getreg_b32 s94, hwreg(HW_REG_HW_ID)
    s_getreg_b32 s95, hwreg(HW_REG_XCC_ID)""")
    for k in range(32):
        a(f"v_writelane_b32 v2, s{64+k}, {k}")
    a("""s_mov_b64 exec, 0xffffffff
    global_store_dword v1, v2, s[48:49]
    s_endpgm""")
def cid(r):
    if OMAP:
        a(f"""s_lshl_b32 {r}, s22, 4
        s_or_b32 {r}, {r}, s23""")
    else:
        a(f"""s_and_b32 {r}, s2, 0x70
        s_lshl_b32 s37, s22, 1
        s_or_b32 {r}, {r}, s37
        s_bfe_u32 s37, s2, 0x10003
        s_or_b32 {r}, {r}, s37""")
def tag_from_epoch():
    a("""s_add_u32 s40, s40, 0x7F4A7C15
    s_add_u32 s41, s41, 0x9E3779B9""")
def tagcheck(quads, acc0, acc1):
    first = True
    for q in quads:
        if first:
            a(f"v_xor_b32 v{acc0}, s40, v{q+1}\nv_xor_b32 v{acc1}, s41, v{q+3}")
            first = False
        else:
            a(f"v_bitop3_b32 v{acc0}, v{acc0}, v{q+1}, s40 bitop3:0xf6\nv_bitop3_b32 v{acc1}, v{acc1}, v{q+3}, s41 bitop3:0xf6")
    a(f"v_or_b32 v{acc0}, v{acc0}, v{acc1}\nv_cmp_ne_u32 vcc, 0, v{acc0}")
def pad(n):
    a.label(f"L_pad{n}")
    a("s_cbranch_execz L_common")

if STAMP:
    for k in range(1, 15): a(f"s_mov_b64 s[{64+2*k}:{65+2*k}], 0")
stamp(0)
a(f"""s_cmp_ge_u32 s2, 256
s_cbranch_scc1 L_end
s_load_dwordx8 s[8:15], s[0:1], 0
s_load_dwordx4 s[16:19], s[0:1], 32
s_load_dwordx2 s[20:21], s[0:1], 48
v_lshrrev_b32 v1, 6, v0
s_and_b32 s22, s2, 7
v_readfirstlane_b32 s3, v1
s_lshr_b32 s23, s2, 3""")
C("waves 4-7 first hop (EXEC=0, branch only) to four spots of this 4-KiB code page so that the")
C("instruction cache is filled before the weight stream loads the memory system")
a("""s_cmp_lt_u32 s3, 4
s_cbranch_scc1 L_common
s_mov_b64 exec, 0
s_cmp_eq_u32 s3, 4
s_cbranch_scc1 L_pad1
s_cmp_eq_u32 s3, 5
s_cbranch_scc1 L_pad2
s_cmp_eq_u32 s3, 6
s_cbranch_scc1 L_pad3
s_branch L_pad4""")
a.label("L_common")
C("s22=id%8 s23=id/8 -> s24=column group cg, s25=K quarter kq, s31=helper WG, s32=cg is split 8 ways")
a(f"""s_mov_b64 exec, -1
s_mul_i32 s24, s22, 7
s_lshr_b32 s26, s23, 2
s_and_b32 s25, s23, 3
s_add_u32 s27, s22, 3
s_and_b32 s27, s27, 7
s_cmp_eq_u32 s26, 7
s_cselect_b32 s31, 1, 0
s_cselect_b32 s26, s27, s26
s_cmp_eq_u32 s26, 7
s_cbranch_scc1 L_end
s_cmp_eq_u32 s26, s27
s_cselect_b32 s32, 1, 0
s_add_u32 s24, s24, s26
s_mov_b32 s28, 0x05040100
s_mov_b32 s29, 0x07060302
v_and_b32 v2, 7, v0
v_and_b32 v7, 63, v0
s_cmp_gt_u32 s3, 3
s_cbranch_scc1 L_B""")
C("================ waves 0-3: gate/up partial sums, 64 rows x 64 columns per wave")
a(f"""v_lshrrev_b32 v1, 3, v0
s_lshl_b32 s33, s25, 1
s_add_u32 s33, s33, s31
s_mul_i32 s26, s33, {128*7168}
s_lshl_b32 s27, s24, 7
s_add_u32 s26, s26, s27
v_mul_u32_u24 v3, 57344, v1
v_lshl_add_u32 v3, v2, 4, v3
v_add_u32 v96, s26, v3
s_lshl_b32 s27, s33, 8
v_lshlrev_b32 v4, 4, v1
v_add_u32 v4, s27, v4""")
for i in range(1, 8):
    a(f"v_add_u32 v{96+i}, {7168*i}, v96")
G = lambda i: 32 + 4*i
U = lambda i: 64 + 4*i
a("""v_lshlrev_b32 v1, 6, v2
v_bfe_u32 v3, v0, 5, 1
v_lshl_add_u32 v1, v3, 5, v1
v_bfe_u32 v3, v0, 4, 1
v_lshl_add_u32 v1, v3, 4, v1
s_lshl_b32 s26, s3, 9
v_add_u32 v1, s26, v1
s_lshr_b32 s26, s3, 1
s_and_b32 s26, s26, s32
s_waitcnt lgkmcnt(0)
s_cbranch_scc1 L_A_idle""")
stamp(1)
a("global_load_dwordx4 v[8:11], v4, s[8:9]")
seq = []
for i in range(8):
    seq.append(f"global_load_dwordx4 v[{G(i)}:{G(i)+3}], v{96+i}, s[10:11] {NT}")
    seq.append(f"global_load_dwordx4 v[{U(i)}:{U(i)+3}], v{96+i}, s[12:13] {NT}")
for n, l in enumerate(seq):
    if n in ASPLIT: a(f"s_setprio {3 - ASPLIT.index(n)}")
    a(l)
a(f"s_load_dwordx2 s[40:41], s[20:21], {EOFF}")
stamp(2)
C("all gate/up loads are issued: let waves 4-7 start streaming w_down behind them")
a("s_barrier")
C("final-reduction addresses (v103 inbox, v5 output, v104 progress flags)")
cid("s36")
a(f"""s_lshl_b32 s26, s36, 12
s_add_u32 s26, s26, {X2OFF}
v_lshl_add_u32 v103, v7, 4, s26
v_and_b32 v3, 3, v7
v_lshlrev_b32 v5, 4, v3
v_bfe_u32 v3, v7, 5, 1
v_lshl_add_u32 v5, v3, 1, v5
s_lshr_b32 s27, s36, 3
s_lshl_b32 s27, s27, 7
s_and_b32 s33, s36, 1
s_lshl_b32 s33, s33, 6
s_add_u32 s27, s27, s33
s_bfe_u32 s33, s36, 0x20001
s_lshl_b32 s33, s33, 2
s_add_u32 s27, s27, s33
v_add_u32 v5, s27, v5
v_and_b32 v3, 28, v7
v_cmp_eq_u32 s[38:39], 0, v3
s_lshl_b32 s26, s22, 10
s_add_u32 s26, s26, {FLOFF}
v_lshl_add_u32 v104, v7, 3, s26
s_cmp_lg_u32 s31, 0
s_cselect_b32 s42, {HTRIG}, {TRIG}""")
for j in range(16):
    a(f"v_mov_b32 v{12+j}, 0")
total = 17
for p in range(4):
    i = 2*p
    need = 1 + 2*(i+2)
    a(f"s_waitcnt vmcnt({total-need+1})")
    if p == 2: pad(1)
    if p == 0: stamp(3)
    for c in range(4):
        a(f"v_perm_b32 v28, v{G(i+1)+c}, v{G(i)+c}, s28")
        a(f"v_perm_b32 v29, v{G(i+1)+c}, v{G(i)+c}, s29")
        a(f"v_dot2c_f32_bf16 v{12+2*c}, v28, v{8+p}")
        a(f"v_dot2c_f32_bf16 v{13+2*c}, v29, v{8+p}")
    if p == 3:
        C("addresses for the exchanges + gate reduction, under the last load's latency")
        a(f"""v_lshlrev_b32 v3, 3, v7
        v_lshlrev_b32 v6, 4, v7
        s_lshl_b32 s26, s24, 13
        s_lshl_b32 s27, s31, 2
        s_add_u32 s27, s27, s25
        s_lshl_b32 s27, s27, 10
        s_add_u32 s27, s27, s26
        v_add_u32 v4, s27, v6""")
        for j in range(1, 4):
            a(f"""s_add_u32 s33, s25, {j}
            s_and_b32 s33, s33, 3
            s_lshl_b32 s33, s33, 10
            s_add_u32 s33, s33, s26
            v_add_u32 v{96+j}, s33, v6""")
        a(f"""s_add_u32 s33, s26, 4096
        v_add_u32 v96, s33, v6
        v_mov_b32 v100, {LDS_FLAG}
        v_mov_b32 v101, 1
        s_mov_b32 s35, {SPIN}
        s_lshl_b32 s34, s32, 1
        s_sub_u32 s34, 3, s34""")
        for j in range(4):
            a(f"v_permlane32_swap_b32 v{12+j}, v{16+j}")
        for j in range(4):
            a(f"v_add_f32 v{12+j}, v{12+j}, v{16+j}")
        a("""s_nop 0
        v_permlane16_swap_b32 v12, v14
        v_permlane16_swap_b32 v13, v15
        v_add_f32 v12, v12, v14
        v_add_f32 v13, v13, v15
        s_nop 0
        v_add_f32_dpp v16, v12, v12 row_ror:8 row_mask:0xf bank_mask:0xf
        v_add_f32_dpp v18, v13, v13 row_ror:8 row_mask:0xf bank_mask:0xf""")
    a(f"s_waitcnt vmcnt({total-need})")
    if p == 3: stamp(4)
    for c in range(4):
        a(f"v_perm_b32 v28, v{U(i+1)+c}, v{U(i)+c}, s28")
        a(f"v_perm_b32 v29, v{U(i+1)+c}, v{U(i)+c}, s29")
        a(f"v_dot2c_f32_bf16 v{20+2*c}, v28, v{8+p}")
        a(f"v_dot2c_f32_bf16 v{21+2*c}, v29, v{8+p}")
a("s_nop 0")
for j in range(4):
    a(f"v_permlane32_swap_b32 v{20+j}, v{24+j}")
for j in range(4):
    a(f"v_add_f32 v{20+j}, v{20+j}, v{24+j}")
a("""s_nop 0
v_permlane16_swap_b32 v20, v22
v_permlane16_swap_b32 v21, v23
v_add_f32 v20, v20, v22
v_add_f32 v21, v21, v23
s_nop 0
v_add_f32_dpp v17, v20, v20 row_ror:8 row_mask:0xf bank_mask:0xf
v_add_f32_dpp v19, v21, v21 row_ror:8 row_mask:0xf bank_mask:0xf""")
C("per-wave partials -> LDS; the wave that arrives last sums them and carries on, the others end")
a("""ds_write_b128 v1, v[16:19]
s_mov_b64 exec, 1
ds_add_rtn_u32 v102, v100, v101 offset:4
s_mov_b64 exec, -1
ds_read_b64 v[20:21], v3
ds_read_b64 v[22:23], v3 offset:512
ds_read_b64 v[24:25], v3 offset:1024
ds_read_b64 v[26:27], v3 offset:1536
s_waitcnt lgkmcnt(0)
v_readfirstlane_b32 s33, v102""")
tag_from_epoch()
a("""v_add_f32 v20, v20, v22
v_add_f32 v21, v21, v23
s_cmp_lg_u32 s33, s34
s_cbranch_scc1 L_A_done
v_add_f32 v24, v24, v26
v_add_f32 v25, v25, v27
v_mov_b32 v33, s40
v_mov_b32 v35, s41
s_cmp_lg_u32 s31, 0
v_add_f32 v32, v20, v24
v_add_f32 v34, v21, v25""")
C("exchange 1: granule {g, tagA, u, tagB} per column. Plain store first (fast when the partners share this L2);")
C("a write-through store that every placement can see follows after a few failed polls (L_x1_wt, L_trig_to)")
a("global_store_dwordx4 v4, v[32:35], s[20:21]")
stamp(7)
a("s_cbranch_scc1 L_trig0")
a.label("L_x1")
a(f"""global_load_dwordx4 v[36:39], v97, s[20:21] sc1
global_load_dwordx4 v[40:43], v98, s[20:21] sc1
global_load_dwordx4 v[44:47], v99, s[20:21] sc1
s_sub_u32 s35, s35, 1
s_cbranch_scc1 L_end
s_cmp_eq_u32 s35, {SPIN-LFALL}
s_cbranch_scc1 L_x1_wt""")
a.label("L_x1_cont")
a("""s_cmp_lg_u32 s32, 0
s_cbranch_scc1 L_x1_c3
s_waitcnt vmcnt(0)""")
tagcheck([36, 40, 44], 28, 29)
a("""v_add_f32 v20, v32, v36
v_add_f32 v21, v34, v38
v_add_f32 v24, v40, v44
v_add_f32 v25, v42, v46
s_cbranch_vccnz L_x1""")
a.label("L_x1_sum")
pad(2)
stamp(8)
C("h = bf16(bf16(gelu_tanh(bf16(g))) * bf16(u));  gelu(g) = g / (1 + exp2(g*(c0 + c1*g*g)))")
a(f"""v_add_f32 v12, v20, v24
v_add_f32 v16, v21, v25
v_cvt_pk_bf16_f32 v12, v12, v16
v_and_b32 v16, 0xffff0000, v12
v_lshlrev_b32 v12, 16, v12
v_mul_f32 v13, v12, v12
v_mov_b32 v14, 0xc0135761
v_fmac_f32 v14, 0xbdd2d3e8, v13
v_mul_f32 v13, v12, v14
v_exp_f32 v13, v13
v_lshlrev_b32 v15, 1, v7
v_add_f32 v13, 1.0, v13
v_rcp_f32 v13, v13
s_nop 0
v_mul_f32 v12, v12, v13
v_cvt_pk_bf16_f32 v12, v12, v12
v_lshlrev_b32 v12, 16, v12
v_mul_f32 v12, v12, v16
v_cvt_pk_bf16_f32 v12, v12, v12
ds_write_b16 v15, v12 offset:{LDS_H}
ds_write_b32 v100, v101""")
stamp(9)
if FLPOS == 2:
    a("""v_mov_b32 v30, s40
    v_mov_b32 v31, s41
    s_lshl_b64 exec, 1, s23
    global_store_dwordx2 v104, v[30:31], s[20:21]
    s_mov_b64 exec, -1""")
R = lambda k: 36 + 4*k
a(f"""s_mov_b32 s35, {SPIN}
v_mov_b32 v{R(3)}, 0
v_mov_b32 v{R(3)+1}, s40
v_mov_b32 v{R(3)+2}, 0
v_mov_b32 v{R(3)+3}, s41""")
C("progress hint: wait (bounded) until the 28 workgroups with this id%8 have stored their partial outputs")
a.label("L_trig0")
a(f"""s_mov_b64 exec, 0x0fffffff""")
a.label("L_trig")
if NCSL:
    a(f"""s_cmp_lt_u32 s2, 128
    s_cbranch_scc1 L_trig1
    s_sleep {NCSL}""")
    a.label("L_trig1")
a("""global_load_dwordx2 v[28:29], v104, s[20:21] sc1
s_sub_u32 s42, s42, 1
s_cbranch_scc1 L_trig_to
s_waitcnt vmcnt(0)
v_xor_b32 v28, s40, v28
v_bitop3_b32 v28, v28, v29, s41 bitop3:0xf6
v_cmp_ne_u32 vcc, 0, v28
s_cbranch_vccnz L_trig
s_mov_b64 exec, -1""")
a.label("L_trig_done")
if X2FIRST: a(f"s_sleep {X2FIRST}")
stamp(12)
a("""s_cmp_ge_u32 s2, 128
s_cbranch_scc1 L_A_done""")
C("exchange 2: 56 partials x 8 output columns; only lanes whose granule is still missing re-poll")
if STAMP: a("s_memrealtime s[90:91]")
for k in range(3):
    a(f"global_load_dwordx4 v[{R(k)}:{R(k)+3}], v103, s[20:21] offset:{k*1024} sc1")
a(f"""s_mov_b32 exec_hi, 0
global_load_dwordx4 v[{R(3)}:{R(3)+3}], v103, s[20:21] offset:3072 sc1
s_mov_b32 exec_hi, -1""")
a("s_waitcnt vmcnt(0)")
a.label("L_x2_chk")
for k in range(4):
    a(f"""v_xor_b32 v{28+k}, s40, v{R(k)+1}
    v_bitop3_b32 v{28+k}, v{28+k}, v{R(k)+3}, s41 bitop3:0xf6
    v_cmp_ne_u32 s[{52+2*k}:{53+2*k}], 0, v{28+k}""")
a(f"""v_add_f32 v20, v{R(0)}, v{R(1)}
v_add_f32 v21, v{R(0)+2}, v{R(1)+2}
s_or_b64 s[60:61], s[52:53], s[54:55]
s_or_b64 s[62:63], s[56:57], s[58:59]
v_add_f32 v22, v{R(2)}, v{R(3)}
v_add_f32 v23, v{R(2)+2}, v{R(3)+2}
s_or_b64 s[60:61], s[60:61], s[62:63]
v_add_f32 v24, v20, v22
v_add_f32 v25, v21, v23
s_cbranch_scc1 L_x2_retry""")
stamp(10)
a(f"""s_nop 0
v_permlane32_swap_b32 v24, v25
v_add_f32 v20, v24, v25
v_add_f32 v21, v24, v25
s_nop 1
v_permlane16_swap_b32 v20, v21
v_add_f32 v20, v20, v21
s_nop 1
v_add_f32_dpp v20, v20, v20 row_ror:8 row_mask:0xf bank_mask:0xf
s_nop 1
v_add_f32_dpp v20, v20, v20 row_ror:4 row_mask:0xf bank_mask:0xf
v_cvt_pk_bf16_f32 v20, v20, v20
s_mov_b64 exec, s[38:39]
global_store_short v5, v20, s[16:17]
s_cmp_lg_u32 s2, 0
s_cbranch_scc1 L_A_done""")
C("every workgroup has read the epoch by now (all of them feed this sum): advance it")
a(f"""s_mov_b64 exec, 1
v_mov_b32 v22, s40
v_mov_b32 v23, s41
v_mov_b32 v24, {EOFF}
global_store_dwordx2 v24, v[22:23], s[20:21]""")
a.label("L_A_done")
stamp_flush(11)
a("s_endpgm")
a.label("L_x2_retry")
if STAMP:
    a("""s_waitcnt lgkmcnt(0)
    s_mov_b64 s[76:77], s[92:93]
    s_mov_b64 s[92:93], s[90:91]
    s_memrealtime s[90:91]""")
for k in range(4):
    a(f"s_mov_b64 exec, s[{52+2*k}:{53+2*k}]\nglobal_load_dwordx4 v[{R(k)}:{R(k)+3}], v103, s[20:21] offset:{k*1024} sc1")
a("""s_mov_b64 exec, -1
s_sub_u32 s35, s35, 1
s_cbranch_scc1 L_end
s_waitcnt vmcnt(0)
s_branch L_x2_chk""")
a.label("L_trig_to")
C("partners not seen finishing (other placement): make this workgroup's partials visible device-wide")
a("""s_mov_b64 exec, -1
global_store_dwordx4 v4, v[32:35], s[20:21] sc1
s_branch L_trig_done""")
a.label("L_x1_wt")
a("""global_store_dwordx4 v4, v[32:35], s[20:21] sc1
s_branch L_x1_cont""")
a.label("L_x1_c3")
a("""global_load_dwordx4 v[48:51], v96, s[20:21] sc1
global_load_dwordx4 v[52:55], v96, s[20:21] offset:1024 sc1
global_load_dwordx4 v[56:59], v96, s[20:21] offset:2048 sc1
global_load_dwordx4 v[60:63], v96, s[20:21] offset:3072 sc1
s_waitcnt vmcnt(0)""")
tagcheck([36, 40, 44, 48, 52, 56, 60], 28, 29)
a("""s_cbranch_vccnz L_x1
v_add_f32 v20, v32, v36
v_add_f32 v21, v34, v38
v_add_f32 v24, v40, v44
v_add_f32 v25, v42, v46
v_add_f32 v22, v48, v52
v_add_f32 v23, v50, v54
v_add_f32 v26, v56, v60
v_add_f32 v27, v58, v62
v_add_f32 v20, v20, v22
v_add_f32 v21, v21, v23
v_add_f32 v24, v24, v26
v_add_f32 v25, v25, v27
s_branch L_x1_sum""")
a.label("L_A_idle")
C("waves 2,3 of an 8-way split column group: zero partials, LDS flag/counter init")
a(f"""v_mov_b32 v28, 0
v_mov_b32 v29, 0
v_mov_b32 v30, 0
v_mov_b32 v31, 0
v_mov_b32 v24, {LDS_FLAG}
ds_write_b128 v1, v[28:31]
ds_write_b64 v24, v[28:29]
s_waitcnt lgkmcnt(0)
s_barrier
s_endpgm""")

C("================ waves 4-7: w_down tile, 64 rows x 64 columns per wave")
a.label("L_B")
pad(3)
D = lambda i: 32 + 4*i
P = lambda p, c, h: 64 + 8*p + 2*c + h
a(f"""s_cmp_lg_u32 s31, 0
s_cbranch_scc1 L_end
v_lshrrev_b32 v1, 3, v7
s_lshl_b32 s26, s24, 17
s_lshl_b32 s27, s25, 9
s_add_u32 s26, s26, s27
s_add_u32 s30, s3, {WROT}
s_and_b32 s30, s30, 3
s_lshl_b32 s27, s30, 7
s_add_u32 s26, s26, s27
s_add_u32 s26, s26, 4096
v_lshlrev_b32 v3, 14, v1
v_lshl_add_u32 v3, v2, 4, v3
v_add_u32 v3, s26, v3
v_add_u32 v4, 8192, v3
v_lshlrev_b32 v5, 4, v1
v_mov_b32 v24, {LDS_FLAG}
v_mov_b32 v26, 0
v_mov_b32 v27, 0
ds_write_b64 v24, v[26:27]
s_waitcnt lgkmcnt(0)
s_load_dwordx2 s[40:41], s[20:21], {EOFF}
s_lshl_b32 s26, s25, 17
s_lshl_b32 s27, s30, 15
s_add_u32 s26, s26, s27
s_lshl_b32 s27, s24, 6
s_add_u32 s26, s26, s27
s_add_u32 s26, s26, {X2OFF}
v_and_b32 v6, 3, v0
v_lshlrev_b32 v6, 4, v6
v_bfe_u32 v1, v0, 2, 1
v_lshl_add_u32 v6, v1, 12, v6
v_bfe_u32 v1, v0, 4, 2
v_lshl_add_u32 v6, v1, 13, v6
v_add_u32 v6, s26, v6
s_lshl_b32 s26, s22, 10
s_add_u32 s26, s26, {FLOFF}
s_lshl_b32 s37, s23, 3
s_add_u32 s26, s26, s37
v_mov_b32 v28, s26""")
if WARM2 == 1:
    a("""s_mov_b32 s46, 0x00110011
    s_mov_b32 s47, 0x00110011
    s_mov_b64 exec, s[46:47]
    global_load_dword v26, v6, s[20:21]
    s_mov_b64 exec, -1""")
C("wave 4 touches (values unused) the lines this workgroup will store to later, so they are L2-resident")
a(f"""s_cmp_lg_u32 s3, 4
s_cbranch_scc1 L_B_nowarm
s_mov_b64 exec, 1
global_load_dword v26, v28, s[20:21] sc1""")
if WOUT:
    a("""s_lshl_b32 s26, s22, 8
    s_bfe_u32 s27, s23, 0x10003
    s_lshl_b32 s27, s27, 7
    s_add_u32 s26, s26, s27
    s_mov_b64 exec, 3
    v_lshl_add_u32 v27, v7, 6, s26
    global_load_dword v26, v27, s[16:17]""")
if WARM1:
    a(f"""s_lshl_b32 s26, s25, 10
    s_lshl_b32 s27, s24, 13
    s_add_u32 s26, s26, s27
    s_mov_b64 exec, 0xffff
    v_lshl_add_u32 v27, v7, 6, s26
    global_load_dword v26, v27, s[20:21] sc1
    s_cmp_eq_u32 s32, 0
    s_cbranch_scc1 L_B_nowarm0
    v_add_u32 v27, 4096, v27
    global_load_dword v26, v27, s[20:21] sc1""")
    a.label("L_B_nowarm0")
a("s_mov_b64 exec, -1")
a.label("L_B_nowarm")
a(f"""v_and_b32 v1, 8, v0
v_cmp_eq_u32 vcc, 0, v1
s_mov_b32 s35, {SPIN*16}""")
for j in range(8):
    a(f"v_mov_b32 v{12+j}, 0")
a("s_waitcnt lgkmcnt(0)")
tag_from_epoch()
a("""v_mov_b32 v21, s40
v_mov_b32 v23, s41
v_mov_b32 v30, s40
v_mov_b32 v31, s41
s_cmp_eq_u32 s3, 7
s_cselect_b64 s[44:45], 1, 0""")
stamp(1)
a("s_barrier")
stamp(2)
for i in range(8):
    if i in BSPLIT: a(f"s_setprio {3 - BSPLIT.index(i)}")
    a(f"global_load_dwordx4 v[{D(i)}:{D(i)+3}], v{3 + i//4}, s[14:15] offset:{(i%4)*2048-4096} {NT}")
stamp(3)
if WARM2 == 2:
    a("""s_mov_b32 s46, 0x00110011
    s_mov_b32 s47, 0x00110011
    s_mov_b64 exec, s[46:47]
    global_load_dword v26, v6, s[20:21]
    s_mov_b64 exec, -1""")
for p in range(4):
    a(f"s_waitcnt vmcnt({6-2*p+(1 if WARM2 == 2 else 0)})")
    for c in range(4):
        a(f"v_perm_b32 v{P(p,c,0)}, v{D(2*p+1)+c}, v{D(2*p)+c}, s28")
        a(f"v_perm_b32 v{P(p,c,1)}, v{D(2*p+1)+c}, v{D(2*p)+c}, s29")
stamp(4)
pad(4)
a.label("L_B_wait")
a(f"""ds_read_b32 v25, v24
ds_read_b128 v[8:11], v5 offset:{LDS_H}
s_sub_u32 s35, s35, 1
s_cbranch_scc1 L_end
s_waitcnt lgkmcnt(1)
v_readfirstlane_b32 s34, v25
s_cmp_eq_u32 s34, 0
s_waitcnt lgkmcnt(0)
s_cbranch_scc1 L_B_wait""")
stamp(5)
if FLPOS == 1:
    a("""s_mov_b64 exec, s[44:45]
    global_store_dwordx2 v28, v[30:31], s[20:21]
    s_mov_b64 exec, -1""")
for p in range(4):
    for c in range(4):
        a(f"v_dot2c_f32_bf16 v{12+2*c}, v{P(p,c,0)}, v{8+p}")
        a(f"v_dot2c_f32_bf16 v{13+2*c}, v{P(p,c,1)}, v{8+p}")
a("s_nop 2")
for j in range(4):
    a(f"v_permlane32_swap_b32 v{12+j}, v{16+j}")
for j in range(4):
    a(f"v_add_f32 v{12+j}, v{12+j}, v{16+j}")
a("""s_nop 0
v_permlane16_swap_b32 v12, v14
v_permlane16_swap_b32 v13, v15
v_add_f32 v12, v12, v14
v_add_f32 v13, v13, v15
s_nop 0
v_add_f32_dpp v20, v12, v12 row_ror:8 row_mask:0xf bank_mask:0xf
v_add_f32_dpp v22, v13, v13 row_ror:8 row_mask:0xf bank_mask:0xf
""")
if FLB4:
    a("""s_mov_b64 exec, s[44:45]
    global_store_dwordx2 v28, v[30:31], s[20:21]""")
a("""s_mov_b64 exec, vcc
global_store_dwordx4 v6, v[20:23], s[20:21] sc1""")
if FLPOS == 0 and not FLB4:
    a("""s_cmp_lg_u32 s3, 7
    s_cbranch_scc1 L_B_done
    s_mov_b64 exec, 1
    global_store_dwordx2 v28, v[30:31], s[20:21]""")
a.label("L_B_done")
stamp(6)
stamp_flush(7)
a.label("L_end")
a("s_endpgm")
emit_flush()

out = HEADER + f"; @launch grid=(256,1,1) block=(512,1,1) lds=2304\n"
out += '.amdgcn_target "amdgcn-amd-amdhsa--gfx950"\n.text\n'
out += kernel_begin("standalone__geglu_ffn__decode_kernel").replace("p2align 8", "p2align 12") + a.text()
out += '.section .rodata,"a"\n' + kd("standalone__geglu_ffn__decode_kernel", 105, 96 if STAMP else 64)
open(sys.argv[1], "w").write(out)
```

```python
import sys, re
from gen_common import *
src, out = sys.argv[1], sys.argv[2]
MULT = int(sys.argv[3]) if len(sys.argv) > 3 else 10
s = open(src).read()
s = s.replace("standalone__geglu_ffn__decode_kernel:\n", "standalone__geglu_ffn__decode_kernel:\n    s_memrealtime s[64:65]\n", 1)
m = re.search(r"    global_store_short v5, v20, s\[16:17\][^\n]*\n", s)
ins = m.group(0) + """    s_waitcnt vmcnt(0)
    s_memrealtime s[66:67]
    s_lshl_b32 s68, s2, 3
    s_add_u32 s68, s68, 0x8000000
    v_mov_b32 v26, s68
    v_mov_b32 v22, s64
    s_waitcnt lgkmcnt(0)
    v_mov_b32 v23, s66
    global_store_dwordx2 v26, v[22:23], s[20:21]
"""
s = s.replace(m.group(0), ins)
s = s.replace("next_free_sgpr 64", "next_free_sgpr 72")
m = re.search(r"; @launch grid=(\S+) block=(\S+) lds=(\d+)\n", s)
s = s.replace(m.group(0), f"; @launch kernel=standalone__geglu_ffn__decode_kernel grid={m.group(1)} block={m.group(2)} lds={m.group(3)}\n; @launch kernel=readout_kernel grid=(1,1,1) block=(128,1,1) lds=64\n")
a = Asm()
a(f"""s_cmp_ge_u32 s2, 1
s_cbranch_scc1 L_ro_end
s_load_dwordx2 s[20:21], s[0:1], 48
v_mov_b32 v10, 0
v_mov_b32 v11, 0x7fffffff
v_mov_b32 v12, 0x80000000
ds_write_b32 v10, v11
ds_write_b32 v10, v12 offset:4
s_waitcnt lgkmcnt(0)
s_add_u32 s20, s20, 0x8000000
s_addc_u32 s21, s21, 0
s_barrier
global_load_dword v9, v10, s[20:21]
v_lshlrev_b32 v1, 3, v0
global_load_dwordx2 v[2:3], v1, s[20:21]
s_waitcnt vmcnt(0)
v_sub_u32 v2, v2, v9
v_sub_u32 v3, v3, v9
ds_min_i32 v10, v2
ds_max_i32 v10, v3 offset:4
s_waitcnt lgkmcnt(0)
s_barrier
ds_read_b64 v[2:3], v10
s_waitcnt lgkmcnt(0)
v_sub_u32 v2, v3, v2
v_min_u32 v2, 5000, v2
s_nop 1
v_readfirstlane_b32 s6, v2
s_nop 3
s_mul_i32 s6, s6, {MULT}
s_memrealtime s[8:9]
s_waitcnt lgkmcnt(0)""")
a.label("L_ro_spin")
a("""s_memrealtime s[10:11]
s_waitcnt lgkmcnt(0)
s_sub_u32 s12, s10, s8
s_cmp_lt_u32 s12, s6
s_cbranch_scc1 L_ro_spin""")
a.label("L_ro_end")
a("s_endpgm")
s = s.replace('.section .rodata,"a"\n', kernel_begin("readout_kernel") + a.text() + '.section .rodata,"a"\n' + kd("readout_kernel", 16, 32))
open(out, "w").write(s)
```

```python
import sys, re
from gen_common import *
src, out = sys.argv[1], sys.argv[2]
MULT = int(sys.argv[3]) if len(sys.argv) > 3 else 10
s = open(src).read()
s = s.replace("standalone__geglu_ffn__decode_kernel:\n", "standalone__geglu_ffn__decode_kernel:\n    s_memrealtime s[64:65]\n", 1)
m = re.search(r"    global_store_short v5, v20, s\[16:17\][^\n]*\n", s)
ins = m.group(0) + """    s_waitcnt vmcnt(0)
    s_memrealtime s[66:67]
    s_lshl_b32 s68, s2, 3
    s_add_u32 s68, s68, 0x8000000
    v_mov_b32 v26, s68
    v_mov_b32 v22, s64
    s_waitcnt lgkmcnt(0)
    v_mov_b32 v23, s66
    global_store_dwordx2 v26, v[22:23], s[20:21]
"""
PT = sys.argv[4] if len(sys.argv) > 4 else "end"
if PT != "end":
    ins = ins.replace("    s_memrealtime s[66:67]\n", "")
    marks = {"karg": "    s_cbranch_scc1 L_A_idle\n", "first": "    s_waitcnt vmcnt(13)\n", "pub": "    global_store_dwordx4 v4, v[32:35], s[20:21]\n",
             "x1": "    s_cbranch_execz L_common\n    ; h = ", "trig": "L_trig_done:\n"}
    mk = marks[PT]
    assert s.count(mk) == 1, (PT, s.count(mk))
    if PT == "x1": s = s.replace(mk, "    s_cbranch_execz L_common\n    s_memrealtime s[66:67]\n    ; h = ")
    else: s = s.replace(mk, mk + "    s_memrealtime s[66:67]\n")
s = s.replace(m.group(0), ins)
s = s.replace("next_free_sgpr 64", "next_free_sgpr 72")
m = re.search(r"; @launch grid=(\S+) block=(\S+) lds=(\d+)\n", s)
s = s.replace(m.group(0), f"; @launch kernel=standalone__geglu_ffn__decode_kernel grid={m.group(1)} block={m.group(2)} lds={m.group(3)}\n; @launch kernel=readout_kernel grid=(1,1,1) block=(128,1,1) lds=64\n")
a = Asm()
a(f"""s_cmp_ge_u32 s2, 1
s_cbranch_scc1 L_ro_end
s_load_dwordx2 s[20:21], s[0:1], 48
v_mov_b32 v10, 0
v_mov_b32 v11, 0x7fffffff
v_mov_b32 v12, 0x80000000
ds_write_b32 v10, v11
ds_write_b32 v10, v12 offset:4
s_waitcnt lgkmcnt(0)
s_add_u32 s20, s20, 0x8000000
s_addc_u32 s21, s21, 0
s_barrier
global_load_dword v9, v10, s[20:21]
v_lshlrev_b32 v1, 3, v0
global_load_dwordx2 v[2:3], v1, s[20:21]
s_waitcnt vmcnt(0)
v_sub_u32 v2, v2, v9
v_sub_u32 v3, v3, v9
ds_min_i32 v10, v2
ds_max_i32 v10, v3 offset:4
s_waitcnt lgkmcnt(0)
s_barrier
ds_read_b64 v[2:3], v10
s_waitcnt lgkmcnt(0)
v_sub_u32 v2, v3, v2
v_min_u32 v2, 5000, v2
s_nop 1
v_readfirstlane_b32 s6, v2
s_nop 3
s_mul_i32 s6, s6, {MULT}
s_memrealtime s[8:9]
s_waitcnt lgkmcnt(0)""")
a.label("L_ro_spin")
a("""s_memrealtime s[10:11]
s_waitcnt lgkmcnt(0)
s_sub_u32 s12, s10, s8
s_cmp_lt_u32 s12, s6
s_cbranch_scc1 L_ro_spin""")
a.label("L_ro_end")
a("s_endpgm")
s = s.replace('.section .rodata,"a"\n', kernel_begin("readout_kernel") + a.text() + '.section .rodata,"a"\n' + kd("readout_kernel", 16, 32))
open(out, "w").write(s)
```
